```python
import torch

def _softmax(x, axis=-1):
    return torch.softmax(x, dim=axis)
def _gelu(x):
    return torch.nn.functional.gelu(x, approximate="tanh")
def _silu(x):
    return torch.nn.functional.silu(x)
def _sigmoid(x):
    return torch.sigmoid(x)
def _layernorm(x, axis=-1, eps=1e-5):
    m = x.mean(dim=axis, keepdim=True)
    v = x.var(dim=axis, keepdim=True, unbiased=False)
    return (x - m) / torch.sqrt(v + eps)
def _scatter_add(tgt, idx, src, axis=0):
    return tgt.clone().index_add_(axis, idx, src)
def _segment_sum(src, seg, n):
    out = torch.zeros((n,) + src.shape[1:], dtype=src.dtype)
    return out.index_add_(0, seg, src)
def _pad(x, pw):
    flat = tuple(v for pair in reversed(pw) for v in pair)
    return torch.nn.functional.pad(x, flat)

kernel_name = 'parallel_sum__ssm_conv_h3__geglu_ffn__prompt'

def setup_inputs():

    _w = (lambda a: (lambda t: t.to(torch.bfloat16) if t.is_floating_point() else t)(torch.as_tensor(a)))
    def _A_setup():
        B, S, D = 1, 2048, 512
        ks = 4
        return {
            "q": _w((lambda *s: torch.randn(*s, dtype=torch.bfloat16) * 0.05)(B, S, D)),
            "k": _w((lambda *s: torch.randn(*s, dtype=torch.bfloat16) * 0.8)(B, S, D)),
            "v": _w((lambda *s: torch.randn(*s, dtype=torch.bfloat16) * 0.8)(B, S, D)),
            "shift_k": _w((lambda *s: torch.randn(*s, dtype=torch.bfloat16) * 0.8)(D, ks) * 0.5),
            "ssm_k": _w((lambda *s: torch.randn(*s, dtype=torch.bfloat16) * 0.8)(D, S) * (1.0 / S ** 0.5)),
            "ssm_D": _w((lambda *s: torch.randn(*s, dtype=torch.bfloat16) * 0.8)(D)),
        }
    _A_in = _A_setup()

    def _B_setup():
        B, S, D, F = 1, 2048, 512, 1792
        return {
            "x": _w((lambda *s: torch.randn(*s, dtype=torch.bfloat16) * 0.05)(B, S, D)),
            "w_gate": _w((lambda *s: torch.randn(*s, dtype=torch.bfloat16) * 0.05)(D, F)),
            "w_up": _w((lambda *s: torch.randn(*s, dtype=torch.bfloat16) * 0.05)(D, F)),
            "w_down": _w((lambda *s: torch.randn(*s, dtype=torch.bfloat16) * 0.05)(F, D)),
        }
    _B_in = _B_setup()

    return {
        "A_q": _A_in["q"],
        "A_k": _A_in["k"],
        "A_v": _A_in["v"],
        "A_shift_k": _A_in["shift_k"],
        "A_ssm_k": _A_in["ssm_k"],
        "A_ssm_D": _A_in["ssm_D"],
        "B_x": _B_in["x"],
        "B_w_gate": _B_in["w_gate"],
        "B_w_up": _B_in["w_up"],
        "B_w_down": _B_in["w_down"],
    }

def reference(A_q, A_k, A_v, A_shift_k, A_ssm_k, A_ssm_D, B_x, B_w_gate, B_w_up, B_w_down):
    def _A_ref(q, k, v, shift_k, ssm_k, ssm_D):
        B, S, D = q.shape
        ks = shift_k.shape[-1]
        k_pad = _pad(k, ((0, 0), (ks - 1, 0), (0, 0)))
        k_shift = torch.zeros_like(k)
        for t in range(ks):
            k_shift = k_shift + k_pad[:, t:t + S, :] * shift_k[:, ks - 1 - t][None, None, :]
        kv = k_shift * v
        L = 2 * S
        kv_pad = _pad(kv, ((0, 0), (0, S), (0, 0)))
        kf_pad = _pad(ssm_k, ((0, 0), (0, S)))
        kv_f = (lambda x, axes=(-2,-1): torch.fft.rfft2(x.float(), dim=axes))(kv_pad[:, None, :, :], axes=(1, 2))
        kf_f = (lambda x, axes=(-2,-1): torch.fft.rfft2(x.float(), dim=axes))(kf_pad[:, None, :], axes=(1, 2))
        kf_f = (lambda x, *d: x.permute(*d))(kf_f, 1, 2, 0)
        y_f = kv_f * kf_f[None, :, :, :]
        y = (lambda x, s, axes=(-2,-1): torch.fft.irfft2(x, s=s, dim=axes).to(torch.bfloat16))(y_f, (1, L), axes=(1, 2))[:, 0, :S, :]
        y = y + kv * ssm_D[None, None, :]
        return q * y

    def _B_ref(x, w_gate, w_up, w_down):
        return (_gelu(x @ w_gate) * (x @ w_up)) @ w_down

    x = A_q
    xn = _layernorm(x, axis=-1)
    return x + _A_ref(xn, A_k, A_v, A_shift_k, A_ssm_k, A_ssm_D) + _B_ref(xn, B_w_gate, B_w_up, B_w_down)
```

```python
KN = "parallel_sum__ssm_conv_h3__geglu_ffn__prompt_kernel"
HDR = open("parallel_sum__ssm_conv_h3__geglu_ffn__prompt.s.ref").read().split("; Override launch")[0]
class Asm:
    def __init__(self): self.l = []; self.n = 0
    def __call__(self, s):
        for x in s.strip("\n").split("\n"): self.l.append("    " + x.strip() if not x.strip().endswith(":") else x.strip())
    def label(self, p="L"):
        self.n += 1; return f"{p}_{self.n}"
    def text(self): return "\n".join(self.l) + "\n"
def vr(a, n=1): return f"v{a}" if n == 1 else f"v[{a}:{a+n-1}]"
def sr(a, n=1): return f"s{a}" if n == 1 else f"s[{a}:{a+n-1}]"
def kernel(name, body, vgpr=256, sgpr=102, accum=None):
    accum = accum or ((vgpr + 3) // 4 * 4 if vgpr < 256 else 256)
    return (f".globl {name}\n.p2align 8\n.type {name},@function\n{name}:\n{body}    s_endpgm\n",
            f".amdhsa_kernel {name}\n  .amdhsa_next_free_vgpr {vgpr}\n  .amdhsa_next_free_sgpr {sgpr}\n  .amdhsa_accum_offset {accum}\n"
            f"  .amdhsa_group_segment_fixed_size 0\n  .amdhsa_kernarg_size 104\n  .amdhsa_user_sgpr_count 2\n"
            f"  .amdhsa_user_sgpr_kernarg_segment_ptr 1\n  .amdhsa_system_sgpr_workgroup_id_x 1\n.end_amdhsa_kernel\n")
def module(launches, kernels):
    s = HDR + "".join(launches) + '.amdgcn_target "amdgcn-amd-amdhsa--gfx950"\n.text\n'
    for c, _ in kernels: s += c
    s += '.section .rodata,"a"\n'
    for _, d in kernels: s += ".p2align 6\n" + d
    return s
def srd(A, d, lo, nbytes):
    A(f"s_mov_b32 s{d}, s{lo}\ns_and_b32 s{d+1}, s{lo+1}, 0xffff\ns_mov_b32 s{d+2}, {nbytes}\ns_mov_b32 s{d+3}, 0x20000")
```

```python
from gen import *
import sys, math, struct
STAMPS = "--stamps" in sys.argv
OUT = [a for a in sys.argv[1:] if a.endswith(".s")][0]
def opt(name, dflt):
    for a in sys.argv:
        if a.startswith(f"--{name}="): return type(dflt)(a.split("=")[1])
    return dflt
A = Asm()
WS_H = 0; WS_KV = 8 << 20; WS_Y = 10 << 20; WS_ST = 12 << 20; WS_CS = (12 << 20) + 65536
WS_FH = 13 << 20; WS_FP = WS_FH + 16384; WS_FK = WS_FP + 4096; WS_FY = WS_FK + 4096
WS_SZ = 14 << 20
STAMP_OFF = 200 << 20
SPIN = 200000
L_X = 98304; L_M = 159744
L_TAG = L_M + 2048; L_ST2 = L_M + 2560
L_CV = [65536, 131072]
L_YT = 90112
S_WAVE = 3; S_XCD = 4; S_IDX = 5; S_TAG = 6
P_Q, P_K, P_V, P_SH, P_H, P_D, P_BX, P_WG = 16, 18, 20, 22, 24, 26, 28, 30
P_WU, P_WD, P_OUT, P_DBG, P_WS = 32, 34, 36, 38, 40
R_WS = 44; R_A = 48; R_B = 52; R_C = 56; R_D = 60; R_DBG = 64
T = 68
VT = 28
def f2u(x): return struct.unpack("<I", struct.pack("<f", x))[0]
class VQ:
    def __init__(s): s.q = []
    def add(s, tag, n=1): s.q += [tag] * n
    def wait(s, *tags):
        idx = [i for i, t in enumerate(s.q) if t in tags]
        if not idx: return
        n = len(s.q) - 1 - idx[-1]; assert n < 64
        A(f"s_waitcnt vmcnt({n})"); s.q = s.q[idx[-1] + 1:]
def stamp(i, wave):
    if not STAMPS: return
    l = A.label("st")
    A(f"""s_cmp_lg_u32 s{S_WAVE}, {wave}
s_cbranch_scc1 {l}
s_memrealtime s[96:97]
s_waitcnt lgkmcnt(0)
v_writelane_b32 v0, s96, {i}
{l}:""")
def tag_check(vt):
    l = A.label("tag"); d = A.label("tagd")
    A(f"""s_mov_b32 s{T}, {SPIN}
{l}:
v_readfirstlane_b32 s{S_TAG}, v{vt}
v_readfirstlane_b32 s{S_TAG+1}, v{vt+1}
s_cmp_lg_u32 s{S_TAG+1}, 0
s_cbranch_scc1 {d}
s_sleep 2
buffer_load_dwordx2 v[{vt}:{vt+1}], off, s[{R_DBG}:{R_DBG+3}], 0 sc1
s_sub_u32 s{T}, s{T}, 1
s_cmp_lg_u32 s{T}, 0
s_waitcnt vmcnt(0)
s_cbranch_scc1 {l}
{d}:""")
def tag_load(vt): A(f"buffer_load_dwordx2 v[{vt}:{vt+1}], off, s[{R_DBG}:{R_DBG+3}], 0 sc1")
def poll_load(voff, soff, vt): A(f"buffer_load_dwordx2 v[{vt}:{vt+1}], v{voff}, s[{R_WS}:{R_WS+3}], s{soff} offen sc1")
def poll_check(voff, soff, vt):
    l = A.label("pl"); d = A.label("pld")
    A(f"""s_mov_b32 s{T}, {SPIN}
{l}:
v_cmp_ne_u64 vcc, s[{S_TAG}:{S_TAG+1}], v[{vt}:{vt+1}]
s_cbranch_vccz {d}
s_sleep 1""")
    poll_load(voff, soff, vt)
    A(f"""s_sub_u32 s{T}, s{T}, 1
s_cmp_lg_u32 s{T}, 0
s_waitcnt vmcnt(0)
s_cbranch_scc1 {l}
{d}:""")
def poll(voff, soff, vt):
    poll_load(voff, soff, vt); A("s_waitcnt vmcnt(0)"); poll_check(voff, soff, vt)
def publish(soff):
    A(f"""v_mov_b32 v{VT}, s{S_TAG}
v_mov_b32 v{VT+1}, s{S_TAG+1}
s_mov_b64 exec, 1
buffer_store_dwordx2 v[{VT}:{VT+1}], off, s[{R_WS}:{R_WS+3}], s{soff} sc1
s_mov_b64 exec, -1""")
def mfma(d, a, b, c=None): A(f"v_mfma_f32_16x16x32_bf16 {vr(d,4)}, {vr(a,4)}, {vr(b,4)}, {vr(d,4) if c is None else c}")
def dma(voff, r, soff, pol=""): A(f"buffer_load_dwordx4 v{voff}, s[{r}:{r+3}], s{soff} offen {pol} lds")
def h_loads(q):
    srd(A, R_C, P_H, 512 * 2048 * 2); srd(A, R_D, P_D, 1024)
    A(f"""s_lshl_b32 s43, s{S_XCD}, 5
s_add_u32 s43, s43, s{S_IDX}
s_lshl_b32 s43, s43, 1
s_and_b32 s{T}, s{S_WAVE}, 1
s_add_u32 s43, s43, s{T}
s_lshl_b32 s{T}, s43, 12
s_lshl_b32 s{T+1}, s43, 1
v_lshlrev_b32 v9, 4, v2""")
    for n in range(4):
        for c in range(3):
            A(f"buffer_load_dwordx4 {vr(64+12*n+4*c,4)}, v9, s[{R_C}:{R_C+3}], s{T} offen offset:{1024*n+4*c}")
    A(f"buffer_load_ushort v112, off, s[{R_D}:{R_D+3}], s{T+1}")
    q.add("h", 13)

A(f"""s_cmp_ge_u32 s2, 256
s_cbranch_scc1 L_end
s_load_dwordx16 s[16:31], s[0:1], 0
s_load_dwordx8 s[32:39], s[0:1], 64
s_load_dwordx2 s[40:41], s[0:1], 96
v_lshrrev_b32 v1, 6, v0
v_and_b32 v2, 63, v0
s_and_b32 s{S_XCD}, s2, 7
v_readfirstlane_b32 s{S_WAVE}, v1
s_lshr_b32 s{S_IDX}, s2, 3
v_and_b32 v3, 15, v2
v_lshrrev_b32 v1, 4, v2
s_waitcnt lgkmcnt(0)""")
srd(A, R_WS, P_WS, WS_SZ); srd(A, R_DBG, P_DBG, 256)
if STAMPS: A("v_mov_b32 v0, 0")
for w in (0, 4): stamp(0, w)
A(f"""s_cmp_lg_u32 s2, 0
s_cbranch_scc1 L_notag
s_cmp_lg_u32 s{S_WAVE}, 7
s_cbranch_scc1 L_notag
s_memrealtime s[{T}:{T+1}]
s_waitcnt lgkmcnt(0)
s_or_b32 s{T+1}, s{T+1}, 0x80000000
v_mov_b32 v4, s{T}
v_mov_b32 v5, s{T+1}
s_mov_b64 exec, 1
buffer_store_dwordx2 v[4:5], off, s[{R_DBG}:{R_DBG+3}], 0 sc1
s_mov_b64 exec, -1
L_notag:
s_cmp_lt_u32 s{S_IDX}, 4
s_cbranch_scc1 L_prep
s_sub_u32 s{T}, s{S_IDX}, 4
s_and_b32 s8, s{S_XCD}, 3
s_lshl_b32 s8, s8, 2
s_and_b32 s{T+1}, s{T}, 3
s_add_u32 s8, s8, s{T+1}
s_lshr_b32 s9, s{S_XCD}, 2
s_mul_i32 s9, s9, 7
s_lshr_b32 s{T+1}, s{T}, 2
s_add_u32 s9, s9, s{T+1}
s_cmp_lt_u32 s{S_WAVE}, 4
s_cbranch_scc1 L_g1""")
q = VQ()
A(f"""s_sub_u32 s10, s{S_WAVE}, 4
s_cmp_lt_u32 s10, 2
s_cselect_b32 s{T}, s{P_WG}, s{P_WU}
s_cselect_b32 s{T+1}, s{P_WG+1}, s{P_WU+1}""")
srd(A, R_A, T, 512 * 1792 * 2); srd(A, R_B, P_Q, 2048 * 512 * 2)
A(f"""s_and_b32 s11, s10, 1
s_lshl_b32 s11, s11, 4
v_add_u32 v4, s11, v1
v_mul_u32_u24 v4, 3584, v4
v_lshrrev_b32 v5, 1, v3
v_xor_b32 v5, v5, v1
v_lshl_add_u32 v4, v5, 5, v4
v_and_b32 v5, 1, v3
v_lshl_add_u32 v4, v5, 4, v4
v_xor_b32 v5, 128, v4
v_lshrrev_b32 v6, 3, v2
v_and_b32 v7, 7, v2
v_xor_b32 v7, v7, v6
s_lshl_b32 s{T}, s10, 5
v_add_u32 v6, s{T}, v6
v_lshlrev_b32 v6, 10, v6
v_lshl_add_u32 v6, v7, 4, v6
s_lshl_b32 s12, s9, 8
s_lshl_b32 s13, s8, 17
s_lshl_b32 s14, s10, 12
s_add_u32 s15, s14, {L_X}""")
POLW = opt("polw", ""); POLX = opt("polx", "")
def ldW(n):
    for i in range(4):
        A(f"s_add_u32 m0, s14, {(n % 6) * 16384 + i * 1024}\ns_add_u32 s{T}, s12, {(32 * n + 4 * i) * 3584}")
        dma(4 + (i >> 1), R_A, T, POLW)
    q.add(f"w{n}", 4)
def ldX(s):
    for i in range(4):
        A(f"s_add_u32 m0, s15, {(s % 3) * 16384 + i * 1024}\ns_add_u32 s{T}, s13, {i * 8192 + s * 128}")
        dma(6, R_B, T, POLX)
    q.add(f"x{s}", 4)
ldX(0); ldW(0); ldW(1); ldX(1); ldW(2); ldW(3); ldX(2); ldW(4); ldW(5)
A(f"""v_min_u32 v7, 31, v2
v_lshlrev_b32 v7, 3, v7
s_mov_b32 s42, {WS_FP}""")
for n in range(17):
    if n < 16: q.wait(f"w{n}", f"x{n//2}")
    if n == 7:
        q.wait("tag"); tag_check(VT); poll_load(7, 42, VT + 2); q.add("fp")
    if n == 12:
        q.wait("fp"); poll_check(7, 42, VT + 2)
        A(f"""s_lshl_b32 s{T}, s8, 10
s_lshl_b32 s{T+1}, s10, 9
s_add_u32 s{T}, s{T}, s{T+1}
s_add_u32 s{T}, s{T}, {WS_ST}
s_mul_i32 s{T+1}, s10, 7168
s_lshl_b32 s{T+2}, s9, 9
s_add_u32 s{T+1}, s{T+1}, s{T+2}
s_add_u32 s{T+1}, s{T+1}, {WS_CS - 2 * 7168}
s_cmp_lt_u32 s10, 2
s_cselect_b32 s{T}, s{T}, s{T+1}
v_lshlrev_b32 v8, 3, v2
buffer_load_dwordx2 v[10:11], v8, s[{R_WS}:{R_WS+3}], s{T} offen sc1""")
        q.add("st")
    if n == 16:
        q.wait("st")
        A(f"""s_lshl_b32 s{T}, s10, 9
s_add_u32 s{T}, s{T}, {L_M}
v_add_u32 v8, s{T}, v8
ds_write_b64 v8, v[10:11]
v_mov_b32 v8, {L_TAG}
v_mov_b32 v10, s{S_TAG}
v_mov_b32 v11, s{S_TAG+1}
ds_write_b64 v8, v[10:11]
s_waitcnt lgkmcnt(0)""")
    A("s_barrier")
    if n == 0: stamp(1, 4)
    if 1 <= n <= 10: ldW(n + 5)
    if n >= 2 and n % 2 == 0 and n // 2 + 2 < 8: ldX(n // 2 + 2)
    if n == 1: tag_load(VT); q.add("tag")
    if n == 10: h_loads(q)
A("s_branch L_ph2aux")

ACC = 128; FB = [32, 80]; VA_X = 8; VA_W = 10
def acc(j, t): return ACC + (j * 4 + t) * 4
A(f"""L_g1:
s_and_b32 s10, s{S_WAVE}, 1
s_lshr_b32 s11, s{S_WAVE}, 1
v_and_b32 v5, 7, v3
v_xor_b32 v5, v1, v5
v_lshlrev_b32 v5, 4, v5
v_lshl_add_u32 v5, v3, 7, v5
s_lshl_b32 s{T}, s10, 13
s_add_u32 s{T}, s{T}, {L_X}
v_add_u32 v{VA_X}, s{T}, v5
v_xor_b32 v{VA_X+1}, 64, v{VA_X}
v_lshrrev_b32 v5, 2, v3
v_lshl_add_u32 v6, v1, 3, v5
v_lshlrev_b32 v6, 8, v6
v_and_b32 v7, 1, v1
v_lshl_or_b32 v5, v7, 2, v5
s_lshl_b32 s{T}, s11, 2
v_xor_b32 v5, s{T}, v5
v_lshl_add_u32 v6, v5, 5, v6
v_and_b32 v7, 3, v3
v_lshl_add_u32 v{VA_W}, v7, 3, v6
v_xor_b32 v{VA_W+1}, 32, v{VA_W}
v_xor_b32 v{VA_W+2}, 64, v{VA_W}
v_xor_b32 v{VA_W+3}, 96, v{VA_W}
v_mov_b32 v4, 0
v_mov_b32 v5, 0""")
for i in range(64): A(f"v_pk_mul_f32 {vr(ACC+2*i,2)}, v[4:5], v[4:5]")
def g1_reads(buf, par):
    r = []
    for j in range(8):
        for h in range(2):
            r.append(f"ds_read_b64_tr_b16 {vr(FB[buf]+16+4*j+2*h,2)}, v{VA_W+(j&3)} offset:{(j>>2)*8192+h*1024}")
    for t in range(4): r.insert(5 * t, f"ds_read_b128 {vr(FB[buf]+4*t,4)}, v{VA_X+par} offset:{t*2048}")
    return r
def g1_kstep(buf, reads, pre):
    ext = list(pre) + list(reads)
    for j in range(8):
        for t in range(4):
            mfma(acc(j, t), FB[buf] + 16 + 4 * j, FB[buf] + 4 * t)
            if ext: A(ext.pop(0))
    assert not ext
A("s_barrier")
for r in g1_reads(0, 0): A(r)
A(f"s_mov_b32 s12, 0\ns_mov_b32 s13, 0\ns_mov_b32 s14, 0\ns_mov_b32 s43, 16384\nL_g1loop:")
wadv = ["s_add_u32 s12, s12, 1", "s_cmp_eq_u32 s12, 6", f"s_cselect_b32 s15, {-5*16384 & 0xffffffff}, s43", "s_cselect_b32 s12, 0, s12"]
xadv = ["s_add_u32 s14, s14, 1", "s_cmp_eq_u32 s14, 3", f"s_cselect_b32 s42, {-2*16384 & 0xffffffff}, s43", "s_cselect_b32 s14, 0, s14"]
for x in wadv: A(x)
for i in range(4): A(f"v_add_u32 v{VA_W+i}, s15, v{VA_W+i}")
A("s_waitcnt lgkmcnt(0)\ns_barrier")
g1_kstep(0, g1_reads(1, 1), [])
for x in wadv + xadv: A(x)
for i in range(4): A(f"v_add_u32 v{VA_W+i}, s15, v{VA_W+i}")
for i in range(2): A(f"v_add_u32 v{VA_X+i}, s42, v{VA_X+i}")
A("s_waitcnt lgkmcnt(0)\ns_barrier")
g1_kstep(1, g1_reads(0, 0), [])
A("s_add_u32 s13, s13, 1\ns_cmp_lt_u32 s13, 8\ns_cbranch_scc1 L_g1loop\ns_waitcnt lgkmcnt(0)")
stamp(1, 0)
```

```python
from k2a import *
def tile_ids():
    A(f"""s_lshl_b32 s80, s{S_XCD}, 2
s_and_b32 s81, s{S_IDX}, 3
s_add_u32 s80, s80, s81
s_lshr_b32 s81, s{S_IDX}, 2""")
def x_load():
    srd(A, R_B, P_Q, 2048 * 512 * 2)
    A(f"""s_and_b32 s{T}, s{S_WAVE}, 3
s_lshl_b32 s{T}, s{T}, 14
s_lshl_b32 s{T+1}, s80, 16
s_add_u32 s{T}, s{T}, s{T+1}
s_lshr_b32 s{T+1}, s{S_WAVE}, 2
s_lshl_b32 s{T+1}, s{T+1}, 6
s_add_u32 s{T}, s{T}, s{T+1}
s_lshl_b32 s{T+1}, s81, 7
s_add_u32 s{T}, s{T}, s{T+1}
v_lshlrev_b32 v26, 10, v3
v_lshl_add_u32 v26, v1, 4, v26
v_add_u32 v26, s{T}, v26
buffer_load_dwordx4 v[4:7], v26, s[{R_B}:{R_B+3}], 0 offen""")
q = VQ()
A("L_g2pre:")
tile_ids()
srd(A, R_A, P_WD, 1792 * 512 * 2)
A(f"""v_lshrrev_b32 v24, 3, v2
v_bfe_u32 v25, v2, 1, 2
v_xor_b32 v25, v25, v1
v_lshlrev_b32 v24, 10, v24
v_lshl_add_u32 v24, v25, 5, v24
v_and_b32 v25, 1, v2
v_lshl_add_u32 v24, v25, 4, v24
s_mul_i32 s82, s{S_WAVE}, {14*32*1024}
s_lshl_b32 s{T}, s81, 7
s_add_u32 s82, s82, s{T}
s_lshl_b32 s83, s{S_WAVE}, 14
s_lshl_b32 s84, s{S_WAVE}, 13
s_add_u32 s84, s84, {L_X}""")
POLD = opt("pold", "")
def slot(s): s %= 6; return (83, s * 4096) if s < 4 else (84, (s - 4) * 4096)
def ldD(s, emit=True):
    r = []
    b, o = slot(s)
    for i in range(4):
        r.append(f"s_add_u32 m0, s{b}, {o + i * 1024}\ns_add_u32 s{T}, s82, {(32 * s + 8 * i) * 1024}\nbuffer_load_dwordx4 v24, s[{R_A}:{R_A+3}], s{T} offen {POLD} lds")
    return r
for s in range(6):
    for x in ldD(s): A(x)
A(f"s_cmp_lt_u32 s{S_IDX}, 4\ns_cbranch_scc1 L_g2")
A(f"""s_lshl_b32 s{T}, s10, 9
s_add_u32 s{T}, s{T}, {L_M}
v_lshl_add_u32 v5, v3, 3, s{T}
s_lshl_b32 s{T}, s11, 8
s_add_u32 s{T}, s{T}, {L_M + 1024}
v_lshl_add_u32 v6, v1, 4, s{T}
v_mov_b32 v7, {L_TAG}
ds_read_b64 v[14:15], v7""")
for t in range(4): A(f"ds_read_b64 {vr(16+2*t,2)}, v5 offset:{t*128}")
for j in range(8): A(f"ds_read_b128 {vr(32+4*j,4)}, v6 offset:{(j>>2)*512+(j&3)*64}")
C1 = -2 * math.sqrt(2 / math.pi) * math.log2(math.e); C2 = C1 * 0.044715
A(f"""s_mov_b32 s86, {f2u(C1)}
s_mov_b32 s87, {f2u(C1)}
v_mov_b32 v8, {f2u(C2)}
v_mov_b32 v9, {f2u(C2)}
s_lshl_b32 s{T}, s8, 3
s_lshl_b32 s{T+1}, s10, 2
s_add_u32 s{T}, s{T}, s{T+1}
s_mul_i32 s{T}, s{T}, 56
s_lshl_b32 s{T+1}, s9, 2
s_add_u32 s{T}, s{T}, s{T+1}
s_lshl_b32 s{T+1}, s11, 1
s_add_u32 s{T}, s{T}, s{T+1}
s_lshl_b32 s85, s{T}, 10
v_lshlrev_b32 v27, 4, v2
s_waitcnt lgkmcnt(0)
v_readfirstlane_b32 s{S_TAG}, v14
v_readfirstlane_b32 s{S_TAG+1}, v15""")
for t in range(4): A(f"v_rcp_f32 v{10+t}, v{17+2*t}")
def pk(op, d, a, b, c=None, mods=""):
    A(f"v_pk_{op}_f32 {vr(d,2)}, {a}, {b}" + (f", {c}" if c else "") + " " + mods)
for t in range(4):
    st = vr(16 + 2 * t, 2)
    for jp in range(2):
        o = 64 + ((t * 2 + jp) & 1) * 4 ; tm = 80
        prs = [(2 * jp + jj, p) for jj in range(2) for p in range(2)]
        G = [acc(j, t) + 2 * p for j, p in prs]; U = [acc(j + 4, t) + 2 * p for j, p in prs]
        for i, (j, p) in enumerate(prs): pk("fma", G[i], vr(32+4*j+2*p,2), st, vr(G[i],2), "op_sel_hi:[1,0,1] neg_lo:[0,1,0] neg_hi:[0,1,0]")
        for i in range(4): pk("mul", G[i], vr(G[i],2), st, None, "op_sel:[0,1] op_sel_hi:[1,1]")
        for i in range(4): pk("mul", tm+2*i, vr(G[i],2), vr(G[i],2))
        for i in range(4): pk("fma", tm+2*i, vr(tm+2*i,2), "v[8:9]", "s[86:87]")
        for i in range(4): pk("mul", tm+2*i, vr(tm+2*i,2), vr(G[i],2))
        for i, (j, p) in enumerate(prs):
            A(f"v_exp_f32 v{tm+2*i}, v{tm+2*i}\nv_exp_f32 v{tm+2*i+1}, v{tm+2*i+1}")
            pk("fma", U[i], vr(48+4*j+2*p,2), st, vr(U[i],2), "op_sel_hi:[1,0,1] neg_lo:[0,1,0] neg_hi:[0,1,0]")
        for i in range(8): A(f"v_fma_f32 v{tm+i}, v{tm+i}, v{10+t}, v{10+t}")
        for i in range(4):
            A(f"v_rcp_f32 v{tm+2*i}, v{tm+2*i}\nv_rcp_f32 v{tm+2*i+1}, v{tm+2*i+1}")
            pk("mul", G[i], vr(G[i],2), vr(U[i],2))
        for i in range(4): pk("mul", G[i], vr(G[i],2), vr(tm+2*i,2))
        for i in range(4): A(f"v_cvt_pk_bf16_f32 v{o+i}, v{G[i]}, v{G[i]+1}")
        A(f"s_add_u32 s{T}, s85, {t*56*1024}\nbuffer_store_dwordx4 {vr(o,4)}, v27, s[{R_WS}:{R_WS+3}], s{T} offen offset:{jp*1024} sc1")
A(f"""s_lshl_b32 s{T}, s8, 1
s_add_u32 s{T}, s{T}, s10
s_lshl_b32 s{T}, s{T}, 5
s_lshl_b32 s{T+1}, s9, 1
s_add_u32 s{T}, s{T}, s{T+1}
s_add_u32 s{T}, s{T}, s11
s_lshl_b32 s{T}, s{T}, 3
s_add_u32 s85, s{T}, {WS_FH}""")
stamp(2, 0)
A("s_waitcnt vmcnt(0)")
publish(85)
stamp(3, 0)
A("L_g2:")
x_load()
A(f"""v_min_u32 v8, 6, v2
v_lshlrev_b32 v8, 3, v8
s_lshl_b32 s{T}, s80, 8
s_mul_i32 s{T+1}, s{S_WAVE}, 56
s_add_u32 s{T}, s{T}, s{T+1}
s_add_u32 s85, s{T}, {WS_FH}
v_lshlrev_b32 v27, 4, v2
v_lshrrev_b32 v9, 2, v3
v_lshl_add_u32 v9, v1, 2, v9
v_bfe_u32 v10, v9, 1, 2
v_lshlrev_b32 v9, 7, v9
v_lshl_add_u32 v9, v10, 5, v9
v_and_b32 v10, 3, v3
v_lshl_add_u32 v9, v10, 3, v9""")
for i in range(4): A(f"v_xor_b32 v{10+i}, {32*i}, v9\nv_add_u32 v{14+i}, s84, v{10+i}\nv_add_u32 v{10+i}, s83, v{10+i}")
A(f"""s_mul_i32 s{T+1}, s80, {4*56*1024}
s_mul_i32 s86, s{S_WAVE}, {14*1024}
s_add_u32 s86, s86, s{T+1}""")
for t in range(1, 4): A(f"s_add_u32 s{86+t}, s86, {t*56*1024}")
poll(8, 85, VT)
stamp(4, 0)
HD = 8
def ldH(s):
    r = []
    for t in range(4):
        pre = f"s_add_u32 s{86+t}, s{86+t}, 4096\n" if s % 4 == 0 and s > 0 else ""
        r.append(pre + f"buffer_load_dwordx4 {vr(64+(s%HD)*16+4*t,4)}, v27, s[{R_WS}:{R_WS+3}], s{86+t} offen offset:{(s%4)*1024} sc1")
    return r
def rdD(s):
    b, o = slot(s); r = []
    for dt in range(4):
        for h in range(2):
            r.append(f"ds_read_b64_tr_b16 {vr(32+(s&1)*16+4*dt+2*h,2)}, v{(10 if b == 83 else 14)+dt} offset:{o+h*2048}")
    return r
for s in range(HD):
    for x in ldH(s): A(x)
    q.add(f"h{s}", 4)
for x in rdD(0): A(x)
for s in range(14):
    q.wait(f"h{s}", f"d{s+1}")
    A("s_waitcnt lgkmcnt(0)")
    ext = []
    if s + 1 < 14: ext += rdD(s + 1)
    if s + 6 < 14: ext += ldD(s + 6); q.add(f"d{s+6}", 4)
    if s >= 1 and s - 1 + HD < 14: ext += ldH(s - 1 + HD); q.add(f"h{s-1+HD}", 4)
    for dt in range(4):
        for t in range(4):
            mfma(192 + (dt * 4 + t) * 4, 32 + (s & 1) * 16 + 4 * dt, 64 + (s % HD) * 16 + 4 * t, "0" if s == 0 else None)
            if ext: A(ext.pop(0))
    assert not ext
A(f"""v_xor_b32 v9, v1, v3
v_lshlrev_b32 v9, 4, v9
v_lshl_add_u32 v9, v3, 8, v9
v_add_u32 v9, s83, v9
v_xor_b32 v10, 64, v9
v_xor_b32 v11, 128, v9
v_xor_b32 v12, 192, v9
s_nop 4""")
for dt in range(4):
    for t in range(4): A(f"ds_write_b128 v{9+dt}, {vr(192+(dt*4+t)*4,4)} offset:{t*4096}")
stamp(5, 0)
A("s_branch L_fin")

A("L_ph2aux:")
tile_ids(); x_load()
A(f"""s_cmp_eq_u32 s{S_WAVE}, 7
s_cbranch_scc1 L_fin
s_cmp_eq_u32 s{S_WAVE}, 6
s_cbranch_scc0 L_conv
v_min_u32 v8, 31, v2
v_lshlrev_b32 v8, 3, v8
s_mov_b32 s42, {WS_FP}""")
poll(8, 42, VT)
A(f"""v_lshlrev_b32 v8, 3, v2
s_lshl_b32 s{T}, s80, 9
s_add_u32 s{T}, s{T}, {WS_ST}
buffer_load_dwordx2 v[10:11], v8, s[{R_WS}:{R_WS+3}], s{T} offen sc1
s_lshl_b32 s42, s81, 9
s_add_u32 s42, s42, {WS_FY}""")
poll(8, 42, VT)
A(f"""v_add_u32 v9, {L_ST2}, v8
ds_write_b64 v9, v[10:11]
v_lshrrev_b32 v8, 3, v2
v_and_b32 v9, 7, v2
v_lshlrev_b32 v8, 12, v8
v_lshl_add_u32 v8, v9, 4, v8
s_lshl_b32 s{T}, s81, 18
s_lshl_b32 s{T+1}, s80, 7
s_add_u32 s{T}, s{T}, s{T+1}
s_add_u32 s{T}, s{T}, {WS_Y}""")
for n in range(8): A(f"buffer_load_dwordx4 {vr(32+4*n,4)}, v8, s[{R_WS}:{R_WS+3}], s{T} offen sc1\ns_add_u32 s{T}, s{T}, 32768")
A(f"v_lshlrev_b32 v9, 4, v2\nv_add_u32 v9, {L_YT}, v9")
for n in range(8): A(f"s_waitcnt vmcnt({7-n})\nds_write_b128 v9, {vr(32+4*n,4)} offset:{n*1024}")
stamp(5, 6)
A("s_branch L_fin")
A(f"""L_conv:
s_and_b32 s{T}, s{S_WAVE}, 1
s_lshl_b32 s{T}, s{T}, 16
s_add_u32 s82, s{T}, {L_CV[0]}
v_min_u32 v8, 31, v2
v_lshlrev_b32 v8, 3, v8
s_lshl_b32 s42, s{S_XCD}, 8
s_add_u32 s42, s42, {WS_FK}""")
poll_load(8, 42, VT)
A(f"""v_lshl_add_u32 v9, v2, 4, s82
v_mov_b32 v12, 0
v_mov_b32 v13, 0
v_mov_b32 v14, 0
v_mov_b32 v15, 0
v_lshl_add_u32 v10, v2, 3, s82
ds_write_b64 v10, v[12:13] offset:{4*4160}
s_waitcnt vmcnt(1)
v_readfirstlane_b32 s{T}, v64
v_readfirstlane_b32 s{T+1}, v65
v_and_b32 v10, 3, v2
v_lshlrev_b32 v11, 4, v10
v_sub_u32 v11, 48, v11
v_mul_u32_u24 v10, 4160, v10
v_add_u32 v10, s82, v10
v_lshlrev_b64 v[14:15], v11, s[{T}:{T+1}]
v_lshlrev_b64 v[14:15], 16, v[14:15]
ds_write_b64 v10, v[12:13]
ds_write_b64 v10, v[12:13] offset:8
ds_write_b128 v10, v[12:15] offset:16""")
for n in range(4):
    b = 64 + 12 * n
    for i in range(4): A(f"v_alignbit_b32 v{16+i}, v{b+4+i}, v{b+i}, 16\nv_alignbit_b32 v{20+i}, v{b+8+i}, v{b+4+i}, 16")
    for c, r in enumerate([b, 16, b + 4, 20]): A(f"ds_write_b128 v9, {vr(r,4)} offset:{c*4160+32+n*1024}")
    A("s_nop 0")
A("s_waitcnt vmcnt(0)")
poll_check(8, 42, VT)
stamp(2, 4)
A(f"""s_lshl_b32 s{T}, s43, 12
s_add_u32 s{T}, s{T}, {WS_KV}
v_lshlrev_b32 v8, 4, v2""")
for n in range(4): A(f"buffer_load_dwordx4 {vr(64+4*n,4)}, v8, s[{R_WS}:{R_WS+3}], s{T} offen offset:{n*1024} sc1")
A(f"""v_add_u32 v10, 1, v3
v_and_b32 v11, 3, v10
v_mul_u32_u24 v11, 4160, v11
v_lshrrev_b32 v10, 2, v10
v_lshl_add_u32 v10, v10, 3, v11
v_lshl_add_u32 v10, v1, 4, v10
v_add_u32 v10, s82, v10
v_add_u32 v11, 2048, v10
v_lshlrev_b32 v12, 5, v3
v_lshlrev_b32 v13, 4, v1
v_sub_u32 v12, v12, v13
s_add_u32 s{T}, s82, {4*4160+512+16}
v_add_u32 v12, s{T}, v12
v_lshl_add_u32 v13, v1, 3, v3
v_sub_u32 v13, 15, v13
v_and_b32 v14, 1, v13
v_lshlrev_b32 v14, 4, v14
v_lshlrev_b32 v14, v14, v112
v_ashrrev_i32 v13, 1, v13""")
for r in range(4): A(f"v_cmp_eq_u32 vcc, {r}, v13\nv_cndmask_b32 v{16+r}, 0, v14, vcc")
for n in range(4): A(f"s_waitcnt vmcnt({3-n})\nds_write_b128 v9, {vr(64+4*n,4)} offset:{4*4160+512+n*1024}")
CB = [(32, 64), (160, 192)]
def cv_reads(p):
    r = []
    for i in range(8):
        r.append(f"ds_read_b128 {vr(CB[p][1]+4*i,4)}, v12 offset:{512*i}")
        r.append(f"ds_read2_b64 {vr(CB[p][0]+4*i,4)}, v{10+(i>>2)} offset0:{64*(i&3)} offset1:{64*(i&3)+1}")
    return r
A("s_waitcnt lgkmcnt(0)")
for x in cv_reads(0): A(x)
A("s_mov_b32 s83, 0\ns_waitcnt lgkmcnt(0)")
for c in range(8): mfma(128 + 4 * c, 16, 64 + 4 * c, "0")
A("L_cvloop:")
for p in range(2):
    A("v_add_u32 v10, 64, v10\nv_add_u32 v11, 64, v11\nv_subrev_u32 v12, 64, v12\ns_waitcnt lgkmcnt(0)")
    ext = cv_reads(1 - p)
    for a in range(8):
        for m in range(8 - a):
            mfma(128 + 4 * (a + m), CB[p][0] + 4 * a, CB[p][1] + 4 * m)
            if ext: A(ext.pop(0))
A(f"""s_add_u32 s83, s83, 1
s_cmp_lt_u32 s83, 4
s_cbranch_scc1 L_cvloop
s_lshl_b32 s{T}, s43, 12
s_add_u32 s{T}, s{T}, {WS_Y}
v_lshlrev_b32 v8, 5, v3
v_lshl_add_u32 v8, v1, 3, v8
s_lshl_b32 s42, s43, 3
s_add_u32 s42, s42, {WS_FY}
s_nop 2""")
for c in range(8):
    A(f"""v_cvt_pk_bf16_f32 v{96+2*c}, v{128+4*c}, v{129+4*c}
v_cvt_pk_bf16_f32 v{97+2*c}, v{130+4*c}, v{131+4*c}
buffer_store_dwordx2 {vr(96+2*c,2)}, v8, s[{R_WS}:{R_WS+3}], s{T} offen offset:{512*c} sc1""")
stamp(3, 4)
A("s_waitcnt vmcnt(0)")
publish(42)
stamp(4, 4)
A(f"""L_fin:
s_and_b32 s82, s{S_WAVE}, 3
s_lshr_b32 s83, s{S_WAVE}, 2
s_lshl_b32 s{T}, s83, 3
v_lshl_add_u32 v8, v1, 1, s{T}
v_xor_b32 v8, v8, v3
v_lshlrev_b32 v8, 4, v8
v_lshl_add_u32 v8, v3, 8, v8
s_lshl_b32 s{T}, s82, 12
v_add_u32 v8, s{T}, v8
v_xor_b32 v9, 16, v8
s_lshl_b32 s{T}, s82, 7
s_add_u32 s{T}, s{T}, {L_ST2}
v_lshl_add_u32 v10, v3, 3, s{T}
v_lshrrev_b32 v11, 2, v3
v_lshl_add_u32 v11, v1, 3, v11
v_lshlrev_b32 v11, 7, v11
v_and_b32 v12, 3, v3
v_lshl_add_u32 v11, v12, 3, v11
s_lshl_b32 s{T}, s83, 12
s_lshl_b32 s{T+1}, s82, 5
s_add_u32 s{T}, s{T}, s{T+1}
s_add_u32 s{T}, s{T}, {L_YT}
v_add_u32 v11, s{T}, v11
s_waitcnt vmcnt(0) lgkmcnt(0)
s_barrier
ds_read_b64 v[12:13], v10
ds_read_b64_tr_b16 v[16:17], v11
ds_read_b64_tr_b16 v[18:19], v11 offset:512""")
for w in range(4): A(f"ds_read_b128 {vr(32+8*w,4)}, v8 offset:{w*16384}\nds_read_b128 {vr(36+8*w,4)}, v9 offset:{w*16384}")
srd(A, R_A, P_OUT, 2048 * 512 * 2)
for i in range(4): A(f"v_lshlrev_b32 v{64+2*i}, 16, v{4+i}\nv_and_b32 v{65+2*i}, 0xffff0000, v{4+i}")
A("s_waitcnt lgkmcnt(8)")
for i in range(4): A(f"v_lshlrev_b32 v{72+2*i}, 16, v{16+i}\nv_and_b32 v{73+2*i}, 0xffff0000, v{16+i}")
for i in range(4): pk("add", 80+2*i, vr(64+2*i,2), "v[12:13]", None, "op_sel_hi:[1,0] neg_lo:[0,1] neg_hi:[0,1]")
for i in range(4): pk("mul", 80+2*i, vr(80+2*i,2), "v[12:13]", None, "op_sel:[0,1] op_sel_hi:[1,1]")
for i in range(4): pk("fma", 64+2*i, vr(80+2*i,2), vr(72+2*i,2), vr(64+2*i,2))
A("s_waitcnt lgkmcnt(0)")
for i in range(4): pk("add", 32+2*i, vr(32+2*i,2), vr(40+2*i,2)); pk("add", 48+2*i, vr(48+2*i,2), vr(56+2*i,2))
for i in range(4): pk("add", 64+2*i, vr(64+2*i,2), vr(32+2*i,2))
for i in range(4): pk("add", 64+2*i, vr(64+2*i,2), vr(48+2*i,2))
for i in range(4): A(f"v_cvt_pk_bf16_f32 v{4+i}, v{64+2*i}, v{65+2*i}")
A(f"buffer_store_dwordx4 v[4:7], v26, s[{R_A}:{R_A+3}], 0 offen")
if STAMPS:
    for w in (0, 4): stamp(6, w)
    srd(A, R_B, P_WS, 268435456)
    A(f"""s_lshl_b32 s{T}, s2, 3
s_add_u32 s{T}, s{T}, s{S_WAVE}
s_lshl_b32 s{T}, s{T}, 8
s_add_u32 s{T}, s{T}, {STAMP_OFF}
v_lshlrev_b32 v2, 2, v2
buffer_store_dword v0, v2, s[{R_B}:{R_B+3}], s{T} offen""")
A("s_endpgm")
```

```python
from k2b import *
A("L_prep:")
q = VQ()
srd(A, R_A, P_Q, 2048 * 512 * 2)
A(f"""s_and_b32 s8, s{S_XCD}, 3
s_lshl_b32 s9, s8, 2
s_add_u32 s9, s9, s{S_IDX}
s_lshl_b32 s8, s8, 3
s_lshr_b32 s10, s{S_XCD}, 2
s_lshl_b32 s{T}, s10, 2
s_add_u32 s8, s8, s{T}
s_add_u32 s8, s8, s{S_IDX}
s_lshl_b32 s{T}, s8, 16
s_lshl_b32 s{T+1}, s{S_WAVE}, 13
s_add_u32 s{T}, s{T}, s{T+1}
v_lshrrev_b32 v4, 3, v2
v_and_b32 v5, 7, v2
v_lshlrev_b32 v6, 10, v4
v_lshl_add_u32 v6, v5, 4, v6""")
for n in range(8): A(f"buffer_load_dwordx4 {vr(32+4*n,4)}, v6, s[{R_A}:{R_A+3}], s{T} offen offset:{128*n}")
q.add("x", 8)
A(f"""s_cmp_ge_u32 s9, 14
s_cselect_b32 s{T}, 2, 0
s_sub_u32 s9, s9, s{T}
s_and_b32 s11, s9, 1
s_lshr_b32 s12, s9, 1
s_mul_i32 s10, s10, 7
s_add_u32 s12, s12, s10
s_cmp_eq_u32 s11, 0
s_cselect_b32 s{T}, s{P_WG}, s{P_WU}
s_cselect_b32 s{T+1}, s{P_WG+1}, s{P_WU+1}""")
srd(A, R_B, T, 512 * 1792 * 2)
A(f"""v_mul_u32_u24 v7, 3584, v1
v_lshl_add_u32 v7, v3, 4, v7
s_mul_i32 s{T}, s{S_WAVE}, {4*3584}
s_lshl_b32 s{T+1}, s12, 8
s_add_u32 s{T}, s{T}, s{T+1}""")
for n in range(16):
    A(f"buffer_load_dwordx4 {vr(64+4*n,4)}, v7, s[{R_B}:{R_B+3}], s{T} offen\ns_add_u32 s{T}, s{T}, {32*3584}"); q.add(f"w{n}")
srd(A, R_C, P_K, 2048 * 512 * 2); srd(A, R_D, P_V, 2048 * 512 * 2); srd(A, R_A, P_SH, 4096)
A(f"""s_lshl_b32 s{T}, s{S_IDX}, 19
s_lshl_b32 s{T+1}, s{S_WAVE}, 16
s_add_u32 s{T}, s{T}, s{T+1}
s_lshl_b32 s{T+1}, s{S_XCD}, 7
s_add_u32 s{T}, s{T}, s{T+1}
v_lshlrev_b32 v8, 13, v4
v_lshl_add_u32 v8, v5, 4, v8
v_add_u32 v8, s{T}, v8
v_add_u32 v9, 4096, v8
v_subrev_u32 v10, 3072, v8
v_subrev_u32 v11, 2048, v8
v_subrev_u32 v12, 1024, v8
v_lshlrev_b32 v13, 6, v5
s_lshl_b32 s{T}, s{S_XCD}, 9""")
for n in range(4): A(f"buffer_load_dwordx4 {vr(204+4*n,4)}, v13, s[{R_A}:{R_A+3}], s{T} offen offset:{16*n}")
for n in range(3): A(f"buffer_load_dwordx4 {vr(128+4*n,4)}, v{10+n}, s[{R_C}:{R_C+3}], 0 offen")
for n in range(8):
    A(f"buffer_load_dwordx4 {vr(140+4*n,4)}, v{8+(n>>2)}, s[{R_C}:{R_C+3}], 0 offen offset:{1024*(n&3)}")
    A(f"buffer_load_dwordx4 {vr(172+4*n,4)}, v{8+(n>>2)}, s[{R_D}:{R_D+3}], 0 offen offset:{1024*(n&3)}")
q.add("kv", 23)
tag_load(VT); q.add("tag")
A("v_mov_b32 v14, 0\nv_mov_b32 v15, 0\ns_mov_b32 s13, 0x3f803f80")
q.wait("x")
for i in range(32): A(f"v_dot2_f32_bf16 v14, v{32+i}, s13, v14\nv_dot2_f32_bf16 v15, v{32+i}, v{32+i}, v15")
for d in ("quad_perm:[1,0,3,2]", "quad_perm:[2,3,0,1]", "row_half_mirror"):
    A(f"s_nop 1\nv_add_f32_dpp v14, v14, v14 {d} row_mask:0xf bank_mask:0xf\nv_add_f32_dpp v15, v15, v15 {d} row_mask:0xf bank_mask:0xf")
A(f"""v_mul_f32 v14, {f2u(1/512)}, v14
v_mul_f32 v15, {f2u(1/512)}, v15
v_fma_f32 v15, -v14, v14, v15
v_max_f32 v15, 0, v15
v_cvt_pk_bf16_f32 v16, v14, v15
v_lshlrev_b32 v14, 16, v16
v_and_b32 v15, 0xffff0000, v16
v_add_f32 v15, {f2u(1e-5)}, v15
v_cvt_pk_bf16_f32 v15, v15, v15
v_and_b32 v15, 0xffff0000, v15
v_sqrt_f32 v15, v15
s_lshl_b32 s{T}, s{S_WAVE}, 6
v_cvt_pk_bf16_f32 v15, v15, v15
v_and_b32 v15, 0xffff0000, v15
v_rcp_f32 v15, v15
v_lshl_add_u32 v16, v4, 3, s{T}
ds_write_b64 v16, v[14:15] offset:16384""")
for n in range(16):
    q.wait(f"w{n}")
    for i in range(4):
        d = 32 + 2 * i if n == 0 else 48 + 2 * i
        A(f"v_lshlrev_b32 v{d}, 16, v{64+4*n+i}\nv_and_b32 v{d+1}, 0xffff0000, v{64+4*n+i}")
    if n:
        for i in range(4): pk("add", 32+2*i, vr(32+2*i,2), vr(48+2*i,2))
A(f"""s_lshl_b32 s{T}, s{S_WAVE}, 11
v_lshl_add_u32 v16, v2, 5, s{T}
ds_write_b128 v16, v[32:35]
ds_write_b128 v16, v[36:39] offset:16
s_waitcnt lgkmcnt(0)
s_barrier
s_waitcnt vmcnt(0)""")
tag_check(VT)
A(f"""s_cmp_lg_u32 s{S_WAVE}, 0
s_cbranch_scc1 L_kv
v_lshlrev_b32 v16, 3, v2
ds_read_b64 v[14:15], v16 offset:16384""")
for n in range(32): A(f"ds_read_b64 {vr(32+2*n,2)}, v16 offset:{512*n}")
A(f"""s_lshl_b32 s{T}, s8, 9
s_add_u32 s{T}, s{T}, {WS_ST}
s_mul_i32 s{T+1}, s11, 7168
s_lshl_b32 s{T+2}, s12, 9
s_add_u32 s{T+1}, s{T+1}, s{T+2}
s_add_u32 s{T+1}, s{T+1}, {WS_CS}
s_lshl_b32 s42, s8, 3
s_add_u32 s42, s42, {WS_FP}
s_waitcnt lgkmcnt(0)
buffer_store_dwordx2 v[14:15], v16, s[{R_WS}:{R_WS+3}], s{T} offen sc1""")
for h in (16, 8, 4, 2, 1):
    for n in range(h): pk("add", 32+2*n, vr(32+2*n,2), vr(32+2*(n+h),2))
A(f"buffer_store_dwordx2 v[32:33], v16, s[{R_WS}:{R_WS+3}], s{T+1} offen sc1\ns_waitcnt vmcnt(0)")
publish(42)
stamp(1, 0)
A("L_kv:")
for c in range(8):
    for hh in range(2):
        A(f"v_lshlrev_b32 v{32+(2*hh)*8+c}, 16, v{204+2*c+hh}\nv_and_b32 v{32+(2*hh+1)*8+c}, 0xffff0000, v{204+2*c+hh}")
def unp(d, s):
    for i in range(4): A(f"v_lshlrev_b32 v{d+2*i}, 16, v{s+i}\nv_and_b32 v{d+2*i+1}, 0xffff0000, v{s+i}")
KR = lambda r: 220 + 8 * (r & 3)
for r in range(3): unp(KR(r), 128 + 4 * r)
for t in range(8):
    unp(KR(t + 3), 128 + 4 * (t + 3)); unp(16, 172 + 4 * t)
    R = 64 + 8 * t
    for i in range(4): pk("mul", R+2*i, vr(KR(t)+2*i,2), vr(32+24+2*i,2))
    for tau in (2, 1, 0):
        for i in range(4): pk("fma", R+2*i, vr(KR(t+3-tau)+2*i,2), vr(32+8*tau+2*i,2), vr(R+2*i,2))
    for i in range(4): pk("mul", R+2*i, vr(R+2*i,2), vr(16+2*i,2))
A(f"""s_lshl_b32 s{T}, s{S_WAVE}, 13
s_add_u32 s{T}, s{T}, 32768
v_xor_b32 v6, v4, v5
v_lshlrev_b32 v6, 4, v6
v_lshl_add_u32 v6, v5, 10, v6
v_add_u32 v6, s{T}, v6
v_lshl_add_u32 v7, v2, 4, s{T}""")
for c in range(8):
    for i in range(4): A(f"v_cvt_pk_bf16_f32 v{128+4*c+i}, v{64+8*(7-2*i)+c}, v{64+8*(6-2*i)+c}")
    A(f"ds_write_b128 v6, {vr(128+4*c,4)} offset:{128*c}")
A("s_waitcnt lgkmcnt(0)")
for n in range(8): A(f"v_xor_b32 v8, {16*n}, v7\nds_read_b128 {vr(160+4*n,4)}, v8 offset:{1024*n}")
A(f"""v_lshlrev_b32 v8, 12, v4
v_lshl_add_u32 v8, v5, 4, v8
s_lshl_b32 s{T+1}, s{S_XCD}, 18
s_lshl_b32 s{T+2}, s{S_IDX}, 10
s_add_u32 s{T+1}, s{T+1}, s{T+2}
s_lshl_b32 s{T+2}, s{S_WAVE}, 7
s_add_u32 s{T+1}, s{T+1}, s{T+2}
s_add_u32 s{T+1}, s{T+1}, {WS_KV}
s_lshl_b32 s42, s{S_XCD}, 8
s_lshl_b32 s{T+2}, s{S_IDX}, 6
s_add_u32 s42, s42, s{T+2}
s_lshl_b32 s{T+2}, s{S_WAVE}, 3
s_add_u32 s42, s42, s{T+2}
s_add_u32 s42, s42, {WS_FK}""")
for n in range(8):
    A(f"s_waitcnt lgkmcnt({7-n})\nbuffer_store_dwordx4 {vr(160+4*n,4)}, v8, s[{R_WS}:{R_WS+3}], s{T+1} offen sc1\ns_add_u32 s{T+1}, s{T+1}, 32768")
A("s_waitcnt vmcnt(0)")
publish(42)
stamp(7, 0); stamp(1, 4)
A(f"""s_barrier
s_cmp_lt_u32 s{S_WAVE}, 4
s_cbranch_scc1 L_g2pre""")
h_loads(VQ())
A("s_branch L_ph2aux\nL_end:")
open(OUT, "w").write(module(["; @launch grid=(256,1,1) block=(512,1,1) lds=163840\n"], [kernel(KN, A.text())]))
```

```python
from gen import *
import sys, math, struct
STAMPS = "--stamps" in sys.argv
OUT = [a for a in sys.argv[1:] if a.endswith(".s")][0]
def opt(name, dflt):
    for a in sys.argv:
        if a.startswith(f"--{name}="): return type(dflt)(a.split("=")[1])
    return dflt
A = Asm()
WS_H = 0; WS_KV = 14 << 20; WS_Y = 10 << 20; WS_ST = 12 << 20; KVS = 65536 + 768; WS_CS = (12 << 20) + 65536
FS = opt("fs", 7)
WS_FH = 13 << 20; WS_FK = WS_FH + (1024 << FS); WS_FY = WS_FK + (256 << FS)
SLP = opt("slp", 4)
WS_SZ = 17 << 20
STAMP_OFF = 200 << 20
SPIN = 200000
L_X = 98304; L_M = 159744
L_TAG = L_M + 2048; L_ST2 = L_M + 2560
L_CV = 98304; CH_SZ = 21248; L_EX = 140800; L_PF = L_M + 3072; RING = 24576
S_WAVE = 3; S_XCD = 4; S_IDX = 5; S_TAG = 6
P_Q, P_K, P_V, P_SH, P_H, P_D, P_BX, P_WG = 16, 18, 20, 22, 24, 26, 28, 30
P_WU, P_WD, P_OUT, P_DBG, P_WS = 32, 34, 36, 38, 40
R_WS = 44; R_A = 48; R_B = 52; R_C = 56; R_D = 60; R_DBG = 64
T = 68
VT = 28
def f2u(x): return struct.unpack("<I", struct.pack("<f", x))[0]
class VQ:
    def __init__(s): s.q = []
    def add(s, tag, n=1): s.q += [tag] * n
    def wait(s, *tags):
        idx = [i for i, t in enumerate(s.q) if t in tags]
        if not idx: return
        n = len(s.q) - 1 - idx[-1]; assert n < 64
        A(f"s_waitcnt vmcnt({n})"); s.q = s.q[idx[-1] + 1:]
def stamp(i, wave=0):
    if not STAMPS: return
    A(f"""s_memrealtime s[96:97]
s_waitcnt lgkmcnt(0)
v_writelane_b32 v0, s96, {i}""")
def tag_check(vt):
    l = A.label("tag"); d = A.label("tagd")
    A(f"""s_mov_b32 s{T}, {SPIN}
{l}:
v_readfirstlane_b32 s{S_TAG}, v{vt}
v_readfirstlane_b32 s{S_TAG+1}, v{vt+1}
s_cmp_lg_u32 s{S_TAG+1}, 0
s_cbranch_scc1 {d}
s_sleep 2
buffer_load_dwordx2 v[{vt}:{vt+1}], off, s[{R_DBG}:{R_DBG+3}], 0 sc1
s_sub_u32 s{T}, s{T}, 1
s_cmp_lg_u32 s{T}, 0
s_waitcnt vmcnt(0)
s_cbranch_scc1 {l}
{d}:""")
def tag_load(vt): A(f"buffer_load_dwordx2 v[{vt}:{vt+1}], off, s[{R_DBG}:{R_DBG+3}], 0 {opt('tagpol', '')}")
def poll_load(voff, soff, vt): A(f"buffer_load_dwordx2 v[{vt}:{vt+1}], v{voff}, s[{R_WS}:{R_WS+3}], s{soff} offen sc1")
def poll_check(voff, soff, vt):
    l = A.label("pl"); d = A.label("pld")
    A(f"""s_mov_b32 s{T}, {SPIN}
{l}:
v_cmp_ne_u64 vcc, s[{S_TAG}:{S_TAG+1}], v[{vt}:{vt+1}]
s_cbranch_vccz {d}
s_sleep {SLP}""")
    poll_load(voff, soff, vt)
    A(f"""s_sub_u32 s{T}, s{T}, 1
s_cmp_lg_u32 s{T}, 0
s_waitcnt vmcnt(0)
s_cbranch_scc1 {l}
{d}:""")
def poll(voff, soff, vt):
    poll_load(voff, soff, vt); A("s_waitcnt vmcnt(0)"); poll_check(voff, soff, vt)
def publish(soff):
    A(f"""v_mov_b32 v{VT}, s{S_TAG}
v_mov_b32 v{VT+1}, s{S_TAG+1}
s_mov_b64 exec, 1
buffer_store_dwordx2 v[{VT}:{VT+1}], off, s[{R_WS}:{R_WS+3}], s{soff} sc1
s_mov_b64 exec, -1""")
def mfma(d, a, b, c=None): A(f"v_mfma_f32_16x16x32_bf16 {vr(d,4)}, {vr(a,4)}, {vr(b,4)}, {vr(d,4) if c is None else c}")
def dma(voff, r, soff, pol=""): A(f"buffer_load_dwordx4 v{voff}, s[{r}:{r+3}], s{soff} offen {pol} lds")
def h_loads(q):
    srd(A, R_C, P_H, 512 * 2048 * 2); srd(A, R_D, P_D, 1024)
    A(f"""s_lshl_b32 s43, s{S_XCD}, 5
s_add_u32 s43, s43, s{S_IDX}
s_lshl_b32 s43, s43, 1
s_bfe_u32 s{T}, s{S_WAVE}, 0x10001
s_add_u32 s43, s43, s{T}
s_and_b32 s90, s{S_WAVE}, 1
s_lshl_b32 s{T}, s43, 12
s_lshl_b32 s{T+1}, s90, 11
s_add_u32 s{T}, s{T}, s{T+1}
s_lshl_b32 s{T+1}, s43, 1
v_lshlrev_b32 v9, 4, v2""")
    for n in range(2):
        for c in range(3):
            A(f"buffer_load_dwordx4 {vr(64+12*n+4*c,4)}, v9, s[{R_C}:{R_C+3}], s{T} offen offset:{1024*n+4*c} {opt('polc','')}")
    A(f"buffer_load_ushort v112, off, s[{R_D}:{R_D+3}], s{T+1}")
    q.add("h", 7)

def fk_poll_load():
    A(f"""v_min_u32 v8, 31, v2
v_lshlrev_b32 v8, {FS}, v8
s_lshl_b32 s42, s{S_XCD}, {5+FS}
s_add_u32 s42, s42, {WS_FK}""")
    poll_load(8, 42, VT + 2)
def tile_ids():
    A(f"""s_lshl_b32 s76, s{S_XCD}, 2
s_and_b32 s77, s{S_IDX}, 3
s_add_u32 s76, s76, s77
s_lshr_b32 s77, s{S_IDX}, 2""")
R_W = 92
def wd_setup():
    srd(A, R_W, P_WD, 1792 * 512 * 2)
    A(f"""v_lshrrev_b32 v24, 3, v2
v_bfe_u32 v25, v2, 1, 2
v_xor_b32 v25, v25, v1
v_lshlrev_b32 v24, 10, v24
v_lshl_add_u32 v24, v25, 5, v24
v_and_b32 v25, 1, v2
v_lshl_add_u32 v24, v25, 4, v24
s_and_b32 s83, s{S_WAVE}, 3
s_mul_i32 s82, s83, {14*32*1024}
s_lshl_b32 s{T}, s77, 7
s_add_u32 s82, s82, s{T}
s_lshl_b32 s83, s83, 12""")
def slot(s): return [4, 5, 0, 1, 2, 3][s % 6] * 16384
def ldD(s):
    return [f"s_add_u32 m0, s83, {slot(s) + i * 1024}\ns_add_u32 s{T}, s82, {(32 * s + 8 * i) * 1024}\nbuffer_load_dwordx4 v24, s[{R_W}:{R_W+3}], s{T} offen {opt('pold', '')} lds" for i in range(4)]
def u_loads():
    A(f"""s_lshl_b32 s{T}, s43, 7
s_mul_i32 s{T+1}, s90, {16*KVS}
s_add_u32 s{T}, s{T}, s{T+1}
s_add_u32 s{T}, s{T}, {WS_KV}
s_add_u32 s{T+1}, s{T}, {8*KVS}
v_lshrrev_b32 v8, 3, v2
v_mul_u32_u24 v8, {KVS}, v8
v_and_b32 v9, 7, v2
v_lshl_add_u32 v8, v9, 4, v8
buffer_load_dwordx4 v[114:117], v8, s[{R_WS}:{R_WS+3}], s{T} offen sc1
buffer_load_dwordx4 v[118:121], v8, s[{R_WS}:{R_WS+3}], s{T+1} offen sc1
v_lshlrev_b32 v8, 3, v2
s_lshl_b32 s{T}, s76, 9
s_add_u32 s{T}, s{T}, {WS_ST}
buffer_load_dwordx2 v[122:123], v8, s[{R_WS}:{R_WS+3}], s{T} offen sc1""")
A(f"""s_cmp_ge_u32 s2, 256
s_cbranch_scc1 L_end
s_load_dwordx16 s[16:31], s[0:1], 0
s_load_dwordx8 s[32:39], s[0:1], 64
s_load_dwordx2 s[40:41], s[0:1], 96
v_lshrrev_b32 v1, 6, v0
v_and_b32 v2, 63, v0
s_and_b32 s{S_XCD}, s2, 7
v_readfirstlane_b32 s{S_WAVE}, v1
s_lshr_b32 s{S_IDX}, s2, 3
v_and_b32 v3, 15, v2
v_lshrrev_b32 v1, 4, v2
s_waitcnt lgkmcnt(0)""")
srd(A, R_WS, P_WS, WS_SZ); srd(A, R_DBG, P_DBG, 256); tile_ids()
A(f"s_lshl_b32 s{T}, s{S_WAVE}, 2\ns_add_u32 s{T}, s{T}, {L_PF}\nv_mov_b32 v4, s{T}\nv_mov_b32 v5, 0\nds_write_b32 v4, v5")
if STAMPS: A("v_mov_b32 v0, 0")
stamp(0)
A(f"""s_cmp_lg_u32 s2, 0
s_cbranch_scc1 L_notag
s_cmp_lg_u32 s{S_WAVE}, 7
s_cbranch_scc1 L_notag
s_memrealtime s[{T}:{T+1}]
s_waitcnt lgkmcnt(0)
s_or_b32 s{T+1}, s{T+1}, 0x80000000
v_mov_b32 v4, s{T}
v_mov_b32 v5, s{T+1}
s_mov_b64 exec, 1
buffer_store_dwordx2 v[4:5], off, s[{R_DBG}:{R_DBG+3}], 0 sc1
s_mov_b64 exec, -1
L_notag:
s_cmp_lt_u32 s{S_IDX}, 4
s_cbranch_scc1 L_prep
s_sub_u32 s{T}, s{S_IDX}, 4
s_and_b32 s8, s{S_XCD}, 3
s_lshl_b32 s8, s8, 2
s_and_b32 s{T+1}, s{T}, 3
s_add_u32 s8, s8, s{T+1}
s_lshr_b32 s9, s{S_XCD}, 2
s_mul_i32 s9, s9, 7
s_lshr_b32 s{T+1}, s{T}, 2
s_add_u32 s9, s9, s{T+1}
s_cmp_lt_u32 s{S_WAVE}, 4
s_cbranch_scc1 L_g1""")
q = VQ()
A(f"""s_sub_u32 s10, s{S_WAVE}, 4
s_cmp_lt_u32 s10, 2
s_cselect_b32 s{T}, s{P_WG}, s{P_WU}
s_cselect_b32 s{T+1}, s{P_WG+1}, s{P_WU+1}""")
srd(A, R_A, T, 512 * 1792 * 2); srd(A, R_B, P_Q, 2048 * 512 * 2)
A(f"""s_and_b32 s11, s10, 1
s_lshl_b32 s11, s11, 4
v_add_u32 v4, s11, v1
v_mul_u32_u24 v4, 3584, v4
v_lshrrev_b32 v5, 1, v3
v_xor_b32 v5, v5, v1
v_lshl_add_u32 v4, v5, 5, v4
v_and_b32 v5, 1, v3
v_lshl_add_u32 v4, v5, 4, v4
v_xor_b32 v5, 128, v4
v_lshrrev_b32 v6, 3, v2
v_and_b32 v7, 7, v2
v_xor_b32 v7, v7, v6
s_lshl_b32 s{T}, s10, 5
v_add_u32 v6, s{T}, v6
v_lshlrev_b32 v6, 10, v6
v_lshl_add_u32 v6, v7, 4, v6
s_lshl_b32 s12, s9, 8
s_lshl_b32 s13, s8, 17
s_lshl_b32 s14, s10, 12
s_add_u32 s15, s14, {L_X}""")
ROT = opt("rot", 1)
A(f"""s_sub_u32 s{T}, s{S_IDX}, 4
s_and_b32 s{T+1}, s{T}, 3
s_lshl_b32 s{T+1}, s{T+1}, 1
s_lshr_b32 s{T}, s{T}, 2
s_add_u32 s{T}, s{T}, s{T+1}
s_and_b32 s{T}, s{T}, {7 if ROT else 0}
s_add_u32 s80, s12, {512*3584}
s_add_u32 s81, s13, 1024
s_mul_i32 s{T+1}, s{T}, {64*3584}
s_add_u32 s12, s12, s{T+1}
s_lshl_b32 s{T+1}, s{T}, 7
s_add_u32 s13, s13, s{T+1}""")
POLW = opt("polw", ""); POLX = opt("polx", "")
def ldW(n):
    for i in range(4):
        A(f"s_add_u32 m0, s14, {(n % 6) * 16384 + i * 1024}\ns_add_u32 s{T}, s12, {(32 * (n & 1) + 4 * i) * 3584}")
        dma(4 + (i >> 1), R_A, T, POLW)
    if n & 1: A(f"s_add_u32 s12, s12, {64*3584}\ns_cmp_eq_u32 s12, s80\ns_cselect_b32 s{T}, {512*3584}, 0\ns_sub_u32 s12, s12, s{T}")
    q.add(f"w{n}", 4)
def ldX(s):
    for i in range(4):
        A(f"s_add_u32 m0, s15, {(s % 3) * 16384 + i * 1024}\ns_add_u32 s{T}, s13, {i * 8192}")
        dma(6, R_B, T, POLX)
    A(f"s_add_u32 s13, s13, 128\ns_cmp_eq_u32 s13, s81\ns_cselect_b32 s{T}, 1024, 0\ns_sub_u32 s13, s13, s{T}")
    q.add(f"x{s}", 4)
ldX(0); ldW(0); ldW(1); ldX(1); ldW(2); ldW(3); ldX(2); ldW(4); ldW(5)
wd_setup()
NT, NK, NU = opt("nt", 5), opt("nk", 10), opt("nu", 13)
for n in range(17):
    if n < 16: q.wait(f"w{n}", f"x{n//2}")
    A("s_barrier")
    if n in (0, 7, 11, 16): stamp({0:1, 7:8, 11:9, 16:11}[n])
    if STAMPS and n in (11, 16): A(f"s_memtime s[96:97]\ns_waitcnt lgkmcnt(0)\nv_writelane_b32 v0, s96, {12 + (n == 16)}")
    if n == NT: tag_load(VT); q.add("tag"); h_loads(q)
    if n in (opt("pf1", 6), opt("pf2", 8)):
        A(f"""s_mul_i32 s{T}, s10, {448*1024}
s_mul_i32 s{T+1}, s{S_IDX}, 8192
s_add_u32 s{T}, s{T}, s{T+1}
s_add_u32 s{T}, s{T}, {(0 if n == opt("pf1", 6) else 224*1024) - 4*8192 & 0xffffffff}
v_lshlrev_b32 v8, 7, v2
buffer_load_dword v113, v8, s[{R_W}:{R_W+3}], s{T} offen""")
        q.add("pf")
    if n == NK: q.wait("tag"); tag_check(VT); fk_poll_load(); q.add("fk")
    if n == NU:
        q.wait("fk"); poll_check(8, 42, VT + 2); stamp(10)
        A(f"""s_lshl_b32 s{T}, s8, 10
s_add_u32 s{T}, s{T}, {WS_ST}
v_lshlrev_b32 v8, 4, v2
buffer_load_dwordx4 v[124:127], v8, s[{R_WS}:{R_WS+3}], s{T} offen sc1""")
        u_loads(); q.add("u", 4)
    if 1 <= n <= 10: ldW(n + 5)
    if n >= 2 and n % 2 == 0 and n // 2 + 2 < 8: ldX(n // 2 + 2)
    if n >= 11:
        for x in ldD(n - 11): A(x)
        q.add("d", 4)
q.wait("u")
A(f"""v_mov_b32 v8, {L_TAG}
ds_write_b64 v8, v[{VT}:{VT+1}]
v_lshlrev_b32 v8, 4, v2
v_add_u32 v8, {L_M}, v8
ds_write_b128 v8, v[124:127]
s_waitcnt lgkmcnt(0)""")
A("s_branch L_ph2aux")

ACC = 128; FB = [32, 80]; VA_X = 8; VA_W = 12
def acc(j, t): return ACC + (j * 4 + t) * 4
A(f"""L_g1:
s_and_b32 s10, s{S_WAVE}, 1
s_lshr_b32 s11, s{S_WAVE}, 1
v_and_b32 v5, 7, v3
v_xor_b32 v5, v1, v5
v_lshlrev_b32 v5, 4, v5
v_lshl_add_u32 v5, v3, 7, v5
s_lshl_b32 s{T}, s10, 13
s_add_u32 s{T}, s{T}, {L_X}
s_lshl_b32 s{T+1}, s11, 12
s_add_u32 s{T}, s{T}, s{T+1}
v_add_u32 v{VA_X}, s{T}, v5
v_xor_b32 v{VA_X+1}, 64, v{VA_X}
v_xor_b32 v{VA_X+2}, 4096, v{VA_X}
v_xor_b32 v{VA_X+3}, 4096, v{VA_X+1}
v_lshrrev_b32 v5, 2, v3
v_lshl_add_u32 v6, v1, 3, v5
v_lshlrev_b32 v6, 8, v6
v_and_b32 v7, 1, v1
v_lshl_or_b32 v5, v7, 2, v5
s_lshl_b32 s{T}, s11, 2
s_lshl_b32 s{T+1}, s10, 1
s_or_b32 s{T}, s{T}, s{T+1}
v_xor_b32 v5, s{T}, v5
v_lshl_add_u32 v6, v5, 5, v6
v_and_b32 v7, 3, v3
v_lshl_add_u32 v{VA_W}, v7, 3, v6
v_xor_b32 v{VA_W+1}, 32, v{VA_W}
v_xor_b32 v{VA_W+2}, 64, v{VA_W}
v_xor_b32 v{VA_W+3}, 96, v{VA_W}
v_mov_b32 v4, 0
v_mov_b32 v5, 0""")
A(f"s_setprio {opt('prio', 0)}")
for i in range(64): A(f"v_pk_mul_f32 {vr(ACC+2*i,2)}, v[4:5], v[4:5]")
for i in range(8): A(f"v_pk_mul_f32 {vr(16+2*i,2)}, v[4:5], v[4:5]")
for i in range(4): A(f"v_mov_b32 v{4+i}, 0x3f803f80")
def g1_reads(buf, par):
    r = []
    for j in range(8):
        for h in range(2):
            r.append(f"ds_read_b64_tr_b16 {vr(FB[buf]+16+4*j+2*h,2)}, v{VA_W+(j&3)} offset:{(j>>2)*8192+h*1024}")
    for t in range(4): r.insert(5 * t, f"ds_read_b128 {vr(FB[buf]+4*t,4)}, v{VA_X+par+(t&2)} offset:{(t&1)*2048}")
    return r
def g1_kstep(buf, reads, pre):
    ext = list(pre) + list(reads)
    for j in range(8):
        for t in range(4):
            mfma(acc(j, t), FB[buf] + 16 + 4 * j, FB[buf] + 4 * t)
            if ext: A(ext.pop(0))
        if j in (0, 1, 4, 5): mfma(16 + 4 * (0, 1, 4, 5).index(j), FB[buf] + 16 + 4 * j, 4)
    assert not ext
A("s_barrier")
for r in g1_reads(0, 0): A(r)
A(f"s_mov_b32 s12, 0\ns_mov_b32 s13, 0\ns_mov_b32 s14, 0\ns_mov_b32 s43, 16384\nL_g1loop:")
wadv = ["s_add_u32 s12, s12, 1", "s_cmp_eq_u32 s12, 6", f"s_cselect_b32 s15, {-5*16384 & 0xffffffff}, s43", "s_cselect_b32 s12, 0, s12"]
xadv = ["s_add_u32 s14, s14, 1", "s_cmp_eq_u32 s14, 3", f"s_cselect_b32 s42, {-2*16384 & 0xffffffff}, s43", "s_cselect_b32 s14, 0, s14"]
for x in wadv: A(x)
for i in range(4): A(f"v_add_u32 v{VA_W+i}, s15, v{VA_W+i}")
A("s_waitcnt lgkmcnt(0)\ns_barrier")
g1_kstep(0, g1_reads(1, 1), [])
for x in wadv + xadv: A(x)
for i in range(4): A(f"v_add_u32 v{VA_W+i}, s15, v{VA_W+i}")
for i in range(4): A(f"v_add_u32 v{VA_X+i}, s42, v{VA_X+i}")
A("s_waitcnt lgkmcnt(0)\ns_barrier")
g1_kstep(1, g1_reads(0, 0), [])
A("s_add_u32 s13, s13, 1\ns_cmp_lt_u32 s13, 8\ns_cbranch_scc1 L_g1loop\ns_waitcnt lgkmcnt(0)")
stamp(1, 0)
def ln_stats(a, b):
    A(f"""v_mul_f32 v{a}, {f2u(1/512)}, v{a}
v_mul_f32 v{b}, {f2u(1/512)}, v{b}
v_fma_f32 v{b}, -v{a}, v{a}, v{b}
v_max_f32 v{b}, 0, v{b}
v_cvt_pk_bf16_f32 v{VT}, v{a}, v{b}
v_lshlrev_b32 v{a}, 16, v{VT}
v_and_b32 v{b}, 0xffff0000, v{VT}
v_add_f32 v{b}, {f2u(1e-5)}, v{b}
v_cvt_pk_bf16_f32 v{b}, v{b}, v{b}
v_and_b32 v{b}, 0xffff0000, v{b}
v_sqrt_f32 v{b}, v{b}
s_nop 0
v_cvt_pk_bf16_f32 v{b}, v{b}, v{b}
v_and_b32 v{b}, 0xffff0000, v{b}
v_rcp_f32 v{b}, v{b}
s_nop 0""")
```

```python
from k4a import *
def x_load():
    srd(A, R_B, P_Q, 2048 * 512 * 2)
    A(f"""s_and_b32 s{T}, s{S_WAVE}, 3
s_lshl_b32 s{T}, s{T}, 14
s_lshl_b32 s{T+1}, s76, 16
s_add_u32 s{T}, s{T}, s{T+1}
s_lshr_b32 s{T+1}, s{S_WAVE}, 2
s_lshl_b32 s{T+1}, s{T+1}, 6
s_add_u32 s{T}, s{T}, s{T+1}
s_lshl_b32 s{T+1}, s77, 7
s_add_u32 s{T}, s{T}, s{T+1}
v_lshlrev_b32 v26, 10, v3
v_lshl_add_u32 v26, v1, 4, v26
v_add_u32 v26, s{T}, v26
buffer_load_dwordx4 v[4:7], v26, s[{R_B}:{R_B+3}], 0 offen""")
q = VQ()
A(f"""s_lshl_b32 s{T}, s10, 9
s_lshl_b32 s{T+1}, s11, 8
s_add_u32 s{T}, s{T}, s{T+1}
s_add_u32 s{T}, s{T}, {L_M}
v_lshl_add_u32 v4, v3, 3, s{T}
v_xor_b32 v5, 256, v4
s_lshl_b32 s{T}, s10, 7
s_add_u32 s{T}, s{T}, s{T+1}
s_add_u32 s{T}, s{T}, {L_M + 1024}
v_lshl_add_u32 v6, v1, 4, s{T}
v_xor_b32 v7, 128, v6
v_mov_b32 v8, {L_TAG}
ds_write_b128 v6, v[16:19]
ds_write_b128 v6, v[20:23] offset:64
ds_write_b128 v6, v[24:27] offset:512
ds_write_b128 v6, v[28:31] offset:576
s_waitcnt lgkmcnt(0)
s_barrier
ds_read_b64 v[14:15], v8""")
stamp(7)
for t in range(4): A(f"ds_read_b64 {vr(16+2*t,2)}, v{4+(t>>1)} offset:{(t&1)*128}")
for j in range(8): A(f"ds_read_b128 {vr(32+4*j,4)}, v{6+((j>>1)&1)} offset:{(j>>2)*512+(j&1)*64}")
C1 = -2 * math.sqrt(2 / math.pi) * math.log2(math.e); C2 = C1 * 0.044715
A(f"""s_mov_b32 s86, {f2u(C1)}
s_mov_b32 s87, {f2u(C1)}
v_mov_b32 v8, {f2u(C2)}
v_mov_b32 v9, {f2u(C2)}
s_lshl_b32 s{T}, s8, 3
s_lshl_b32 s{T+1}, s10, 2
s_add_u32 s{T}, s{T}, s{T+1}
s_mul_i32 s{T}, s{T}, 56
s_lshl_b32 s{T+1}, s9, 2
s_add_u32 s{T}, s{T}, s{T+1}
s_lshl_b32 s{T+1}, s11, 1
s_add_u32 s{T}, s{T}, s{T+1}
s_lshl_b32 s85, s{T}, 10
s_mul_i32 s{T}, s11, {2*56*1024}
s_sub_u32 s84, s85, s{T}
s_add_u32 s84, s84, {2*56*1024}
s_add_u32 s85, s85, s{T}
s_lshl_b32 s{T}, s10, 10
v_lshl_add_u32 v26, v2, 4, s{T}
v_xor_b32 v27, 1024, v26
s_waitcnt lgkmcnt(0)
v_readfirstlane_b32 s{S_TAG}, v14
v_readfirstlane_b32 s{S_TAG+1}, v15""")
for t in range(4): A(f"v_rcp_f32 v{10+t}, v{17+2*t}")
VAR = opt("var", 0); NP = "s_nop 3\n" if VAR & 2 else ""
def pk(op, d, a, b, c=None, mods=""):
    A(f"v_pk_{op}_f32 {vr(d,2)}, {a}, {b}" + (f", {c}" if c else "") + " " + mods)
for t in range(4):
    st = vr(16 + 2 * t, 2)
    for jp in range(2):
        o = 64 + ((t * 2 + jp) & 1) * 4 ; tm = 80
        prs = [(2 * jp + jj, p) for jj in range(2) for p in range(2)]
        G = [acc(j, t) + 2 * p for j, p in prs]; U = [acc(j + 4, t) + 2 * p for j, p in prs]
        for i, (j, p) in enumerate(prs): pk("fma", G[i], vr(32+4*j+2*p,2), st, vr(G[i],2), "op_sel_hi:[1,0,1] neg_lo:[0,1,0] neg_hi:[0,1,0]")
        for i in range(4):
            if VAR & 1: A(f"v_mul_f32 v{G[i]}, v{G[i]}, v{17+2*t}\nv_mul_f32 v{G[i]+1}, v{G[i]+1}, v{17+2*t}")
            else: pk("mul", G[i], vr(G[i],2), st, None, "op_sel:[0,1] op_sel_hi:[1,1]")
        for i in range(4): pk("mul", tm+2*i, vr(G[i],2), vr(G[i],2))
        for i in range(4): pk("fma", tm+2*i, vr(tm+2*i,2), "v[8:9]", "s[86:87]")
        for i in range(4): pk("mul", tm+2*i, vr(tm+2*i,2), vr(G[i],2))
        for i, (j, p) in enumerate(prs):
            A(f"v_exp_f32 v{tm+2*i}, v{tm+2*i}\n{NP}v_exp_f32 v{tm+2*i+1}, v{tm+2*i+1}")
            pk("fma", U[i], vr(48+4*j+2*p,2), st, vr(U[i],2), "op_sel_hi:[1,0,1] neg_lo:[0,1,0] neg_hi:[0,1,0]")
        for i in range(8): A(f"v_fma_f32 v{tm+i}, v{tm+i}, v{10+t}, v{10+t}")
        for i in range(4):
            A(f"v_rcp_f32 v{tm+2*i}, v{tm+2*i}\n{NP}v_rcp_f32 v{tm+2*i+1}, v{tm+2*i+1}")
            pk("mul", G[i], vr(G[i],2), vr(U[i],2))
        for i in range(4): pk("mul", G[i], vr(G[i],2), vr(tm+2*i,2))
        for i in range(4): A(f"v_cvt_pk_bf16_f32 v{o+i}, v{G[i]}, v{G[i]+1}")
        A(f"s_add_u32 s{T}, s{85-(t>>1)}, {(t&1)*56*1024}\nbuffer_store_dwordx4 {vr(o,4)}, v{26+jp}, s[{R_WS}:{R_WS+3}], s{T} offen sc1")
A(f"""s_lshl_b32 s{T}, s8, 1
s_add_u32 s{T}, s{T}, s10
s_lshl_b32 s{T}, s{T}, 5
s_lshl_b32 s{T+1}, s9, 1
s_add_u32 s{T}, s{T}, s{T+1}
s_add_u32 s{T}, s{T}, s11
s_lshl_b32 s{T}, s{T}, {FS}
s_add_u32 s85, s{T}, {WS_FH}""")
if not opt("pubfirst", 1): A("s_barrier")
stamp(2, 0)
A("s_waitcnt vmcnt(0)")
publish(85)
if opt("pubfirst", 1): A("s_barrier")
stamp(3, 0)
A("s_branch L_g2b\nL_g2:\ns_barrier\ns_barrier\nL_g2b:")
wd_setup()
A(f"""v_min_u32 v8, 6, v2
v_lshlrev_b32 v8, {FS}, v8
s_lshl_b32 s{T}, s76, {5+FS}
s_mul_i32 s{T+1}, s{S_WAVE}, {7<<FS}
s_add_u32 s{T}, s{T}, s{T+1}
s_add_u32 s85, s{T}, {WS_FH}
v_lshlrev_b32 v27, 4, v2
v_lshrrev_b32 v9, 2, v3
v_lshl_add_u32 v9, v1, 2, v9
v_bfe_u32 v10, v9, 1, 2
v_lshlrev_b32 v9, 7, v9
v_lshl_add_u32 v9, v10, 5, v9
v_and_b32 v10, 3, v3
v_lshl_add_u32 v9, v10, 3, v9""")
for i in range(4): A(f"v_xor_b32 v{10+i}, {32*i}, v9\nv_add_u32 v{10+i}, s83, v{10+i}\nv_add_u32 v{14+i}, 65536, v{10+i}")
A(f"""s_mul_i32 s{T+1}, s76, {4*56*1024}
s_mul_i32 s86, s{S_WAVE}, {14*1024}
s_add_u32 s86, s86, s{T+1}""")
for t in range(1, 4): A(f"s_add_u32 s{86+t}, s86, {t*56*1024}")
NPRE = opt("npre", 5)
free = [32 + 16 * i for i in range(10)]; HB = {}; WB = {}
def ldH(s):
    r = []; HB[s] = free.pop(0); q.add(f"h{s}", 4)
    for t in range(4):
        pre = f"s_add_u32 s{86+t}, s{86+t}, 4096\n" if s % 4 == 0 and s > 0 else ""
        r.append(pre + f"buffer_load_dwordx4 {vr(HB[s]+4*t,4)}, v27, s[{R_WS}:{R_WS+3}], s{86+t} offen offset:{(s%4)*1024} {opt('polh','sc1')}")
    return r
def rdD(s):
    o = slot(s); r = []; WB[s] = free.pop(0)
    for dt in range(4):
        for h in range(2): r.append(f"ds_read_b64_tr_b16 {vr(WB[s]+4*dt+2*h,2)}, v{10+dt+4*(o>>16)} offset:{(o&65535)+h*2048}")
    return r
for s in range(NPRE):
    for x in rdD(s): A(x)
    A("s_waitcnt lgkmcnt(0)")
    for x in ldD(s + 6): A(x)
x_load()
poll(8, 85, VT)
stamp(4, 0)
nh = 0; nd = NPRE + 6
while free:
    for x in ldH(nh): A(x)
    nh += 1
for s in range(14):
    q.wait(f"h{s}", f"d{s+1}")
    if s >= NPRE: A("s_waitcnt lgkmcnt(0)")
    ext = []
    if s >= 1: free += [HB[s - 1], WB[s - 1]]
    if NPRE <= s + 1 < 14: ext += rdD(s + 1)
    while free and nh < 14: ext += ldH(nh); nh += 1
    if s >= NPRE and nd < 14: ext += ldD(nd); q.add(f"d{nd}", 4); nd += 1
    for dt in range(4):
        for t in range(4):
            mfma(192 + (dt * 4 + t) * 4, WB[s] + 4 * dt, HB[s] + 4 * t, "0" if s == 0 else None)
            if ext: A(ext.pop(0))
    assert not ext
A(f"""v_xor_b32 v9, v1, v3
v_lshlrev_b32 v9, 4, v9
v_lshl_add_u32 v9, v3, 8, v9
v_add_u32 v9, s83, v9
v_xor_b32 v10, 64, v9
v_xor_b32 v11, 128, v9
v_xor_b32 v12, 192, v9
s_nop 4""")
for dt in range(4):
    for t in range(4): A(f"ds_write_b128 v{9+dt}, {vr(192+(dt*4+t)*4,4)} offset:{t*16384}")
stamp(5, 0)
A("s_branch L_fin")

A("L_ph2aux:")
if opt("pfd", 0):
    A(f"""s_and_b32 s{T}, s{S_IDX}, 3
s_lshl_b32 s{T}, s{T}, 16
s_add_u32 s{T}, s{T}, s82
s_add_u32 s{T}, s{T}, {192*1024}
v_lshlrev_b32 v8, 10, v2
buffer_load_dword v113, v8, s[{R_W}:{R_W+3}], s{T} offen""")
A(f"""s_barrier
s_bfe_u32 s{T}, s{S_WAVE}, 0x10001
s_mul_i32 s{T}, s{T}, {CH_SZ}
s_add_u32 s82, s{T}, {L_CV}
s_lshl_b32 s{T}, s90, 11
s_add_u32 s{T}, s{T}, s82
v_lshl_add_u32 v9, v2, 4, s{T}
v_mov_b32 v12, 0
v_mov_b32 v13, 0
v_lshl_add_u32 v10, v2, 3, s82
ds_write_b64 v10, v[12:13] offset:{4*4160}
s_cmp_lg_u32 s90, 0
s_cbranch_scc1 L_nohead
v_readfirstlane_b32 s{T}, v64
v_readfirstlane_b32 s{T+1}, v65
v_and_b32 v10, 3, v2
v_lshlrev_b32 v11, 4, v10
v_sub_u32 v11, 48, v11
v_mul_u32_u24 v10, 4160, v10
v_add_u32 v10, s82, v10
v_lshlrev_b64 v[14:15], v11, s[{T}:{T+1}]
v_lshlrev_b64 v[14:15], 16, v[14:15]
ds_write_b64 v10, v[12:13]
ds_write_b64 v10, v[12:13] offset:8
ds_write_b128 v10, v[12:15] offset:16
s_branch L_head
L_nohead:
v_mov_b32 v112, 0
L_head:""")
for n in range(2):
    b = 64 + 12 * n
    for i in range(4): A(f"v_alignbit_b32 v{16+i}, v{b+4+i}, v{b+i}, 16\nv_alignbit_b32 v{20+i}, v{b+8+i}, v{b+4+i}, 16")
    for c, r in enumerate([b, 16, b + 4, 20]): A(f"ds_write_b128 v9, {vr(r,4)} offset:{c*4160+32+n*1024}")
    A("s_nop 0")
A(f"""v_lshlrev_b32 v8, 3, v2
v_add_u32 v8, {L_ST2}, v8
ds_write_b64 v8, v[122:123]
ds_write_b128 v9, v[114:117] offset:{4*4160+512}
ds_write_b128 v9, v[118:121] offset:{4*4160+512+1024}""")
x_load()
A(f"""v_add_u32 v10, 1, v3
v_and_b32 v11, 3, v10
v_mul_u32_u24 v11, 4160, v11
v_lshrrev_b32 v10, 2, v10
v_lshl_add_u32 v10, v10, 3, v11
v_lshl_add_u32 v10, v1, 4, v10
s_lshl_b32 s{T+1}, s90, 8
s_add_u32 s{T}, s82, s{T+1}
v_add_u32 v10, s{T}, v10
v_add_u32 v11, 2048, v10
v_lshlrev_b32 v12, 5, v3
v_lshlrev_b32 v13, 4, v1
v_sub_u32 v12, v12, v13
s_add_u32 s{T}, s82, {4*4160+512+16}
s_sub_u32 s{T}, s{T}, s{T+1}
v_add_u32 v12, s{T}, v12
v_lshl_add_u32 v13, v1, 3, v3
v_sub_u32 v13, 15, v13
v_and_b32 v14, 1, v13
v_lshlrev_b32 v14, 4, v14
v_lshlrev_b32 v14, v14, v112
v_ashrrev_i32 v13, 1, v13""")
for r in range(4): A(f"v_cmp_eq_u32 vcc, {r}, v13\nv_cndmask_b32 v{16+r}, 0, v14, vcc")
CB = [(32, 64), (160, 192)]
def cv_reads(p):
    r = []
    for i in range(8):
        r.append(f"ds_read_b128 {vr(CB[p][1]+4*i,4)}, v12 offset:{512*i}")
        if opt("rd2", 0): r.append(f"ds_read2_b64 {vr(CB[p][0]+4*i,4)}, v{10+(i>>2)} offset0:{64*(i&3)} offset1:{64*(i&3)+1}")
        else: r += [f"ds_read_b64 {vr(CB[p][0]+4*i+2*h,2)}, v10 offset:{512*i+8*h}" for h in range(2)]
    return r
stamp(2)
A("s_waitcnt vmcnt(0) lgkmcnt(0)\ns_barrier")
stamp(7)
for x in cv_reads(0): A(x)
A("s_mov_b32 s83, 0\ns_waitcnt lgkmcnt(0)")
for c in range(8): mfma(128 + 4 * c, 16, 64 + 4 * c, "0")
A("L_cvloop:")
for p in range(2):
    A("v_add_u32 v10, 64, v10\nv_add_u32 v11, 64, v11\nv_subrev_u32 v12, 64, v12\ns_waitcnt lgkmcnt(0)")
    ext = cv_reads(1 - p)
    for a in range(8):
        for m in range(8 - a):
            mfma(128 + 4 * (a + m), CB[p][0] + 4 * a, CB[p][1] + 4 * m)
            if ext: A(ext.pop(0))
A(f"""s_add_u32 s83, s83, 1
s_cmp_lt_u32 s83, 2
s_cbranch_scc1 L_cvloop
s_lshl_b32 s84, s{S_WAVE}, 12
s_add_u32 s84, s84, {L_EX - 4*4096}
v_lshl_add_u32 v9, v2, 4, s84
v_xor_b32 v10, 4096, v9
s_lshl_b32 s{T}, s{S_WAVE}, 2
s_add_u32 s{T}, s{T}, {L_PF}
v_mov_b32 v11, s{T}
v_xor_b32 v12, 4, v11
s_cmp_eq_u32 s90, 0
s_cbranch_scc1 L_noswap""")
for i in range(16): A(f"v_swap_b32 v{128+i}, v{144+i}")
A("L_noswap:")
for c in range(4): A(f"ds_write_b128 v10, {vr(144+4*c,4)} offset:{1024*c}")
A(f"""s_waitcnt lgkmcnt(0)
ds_write_b32 v12, v11
s_mov_b32 s{T}, {SPIN}
L_pair:
ds_read_b32 v13, v11
s_sub_u32 s{T}, s{T}, 1
s_waitcnt lgkmcnt(0)
v_readfirstlane_b32 s{T+1}, v13
s_cmp_eq_u32 s{T}, 0
s_cbranch_scc1 L_paird
s_cmp_eq_u32 s{T+1}, 0
s_cbranch_scc1 L_pair
L_paird:""")
for c in range(4): A(f"ds_read_b128 {vr(144+4*c,4)}, v9 offset:{1024*c}")
A(f"""s_lshl_b32 s{T}, s43, 12
s_lshl_b32 s{T+1}, s90, 11
s_add_u32 s{T}, s{T}, s{T+1}
s_add_u32 s{T}, s{T}, {WS_Y}
v_lshlrev_b32 v8, 5, v3
v_lshl_add_u32 v8, v1, 3, v8
s_lshl_b32 s42, s90, 9
s_add_u32 s42, s42, s43
s_lshl_b32 s42, s42, {FS}
s_add_u32 s42, s42, {WS_FY}""")
for c in range(4):
    A(f"s_waitcnt lgkmcnt({3-c})")
    for i in range(4): A(f"v_add_f32 v{128+4*c+i}, v{128+4*c+i}, v{144+4*c+i}")
    A(f"""v_cvt_pk_bf16_f32 v{96+2*c}, v{128+4*c}, v{129+4*c}
v_cvt_pk_bf16_f32 v{97+2*c}, v{130+4*c}, v{131+4*c}
buffer_store_dwordx2 {vr(96+2*c,2)}, v8, s[{R_WS}:{R_WS+3}], s{T} offen offset:{512*c} sc1""")
stamp(3, 4)
A("s_waitcnt vmcnt(0)")
publish(42)
stamp(4, 4)
A(f"""s_lshr_b32 s42, s76, 4
s_lshl_b32 s42, s42, 9
s_lshl_b32 s{T}, s77, 6
s_lshl_b32 s{T+1}, s{S_WAVE}, 4
s_add_u32 s85, s{T}, s{T+1}
s_sub_u32 s85, s85, 64
s_add_u32 s42, s42, s85
s_lshl_b32 s42, s42, {FS}
s_add_u32 s42, s42, {WS_FY}
v_lshlrev_b32 v8, {FS}, v3
v_lshrrev_b32 v10, 3, v2
v_and_b32 v11, 7, v2
v_lshlrev_b32 v10, 12, v10
v_lshl_add_u32 v10, v11, 4, v10
s_lshl_b32 s85, s85, 12
s_lshl_b32 s{T+1}, s76, 7
s_add_u32 s85, s85, s{T+1}
s_add_u32 s85, s85, {WS_Y}
s_add_u32 s86, s85, 32768""")
poll(8, 42, VT)
A(f"""buffer_load_dwordx4 v[32:35], v10, s[{R_WS}:{R_WS+3}], s85 offen sc1
buffer_load_dwordx4 v[36:39], v10, s[{R_WS}:{R_WS+3}], s86 offen sc1
s_waitcnt vmcnt(1)
ds_write_b128 v9, v[32:35]
s_waitcnt vmcnt(0)
ds_write_b128 v9, v[36:39] offset:1024""")
stamp(5)
A(f"""L_fin:
s_and_b32 s82, s{S_WAVE}, 3
s_lshr_b32 s83, s{S_WAVE}, 2
s_lshl_b32 s{T}, s83, 3
v_lshl_add_u32 v8, v1, 1, s{T}
v_xor_b32 v8, v8, v3
v_lshlrev_b32 v8, 4, v8
v_lshl_add_u32 v8, v3, 8, v8
s_lshl_b32 s{T}, s82, 14
v_add_u32 v8, s{T}, v8
v_xor_b32 v9, 16, v8
s_lshl_b32 s{T}, s82, 7
s_add_u32 s{T}, s{T}, {L_ST2}
v_lshl_add_u32 v10, v3, 3, s{T}
v_lshrrev_b32 v11, 2, v3
v_and_b32 v12, 1, v1
v_lshl_add_u32 v11, v12, 3, v11
v_lshlrev_b32 v11, 7, v11
v_lshrrev_b32 v12, 1, v1
v_lshl_add_u32 v11, v12, 12, v11
v_and_b32 v12, 3, v3
v_lshl_add_u32 v11, v12, 3, v11
s_lshl_b32 s{T}, s83, 13
s_lshl_b32 s{T+1}, s82, 5
s_add_u32 s{T}, s{T}, s{T+1}
s_add_u32 s{T}, s{T}, {L_EX}
v_add_u32 v11, s{T}, v11
s_waitcnt vmcnt(0) lgkmcnt(0)
s_barrier
ds_read_b64 v[12:13], v10
ds_read_b64_tr_b16 v[16:17], v11
ds_read_b64_tr_b16 v[18:19], v11 offset:512""")
for w in range(4): A(f"ds_read_b128 {vr(32+8*w,4)}, v8 offset:{w*4096}\nds_read_b128 {vr(36+8*w,4)}, v9 offset:{w*4096}")
srd(A, R_A, P_OUT, 2048 * 512 * 2)
for i in range(4): A(f"v_lshlrev_b32 v{64+2*i}, 16, v{4+i}\nv_and_b32 v{65+2*i}, 0xffff0000, v{4+i}")
A("s_waitcnt lgkmcnt(8)")
for i in range(4): A(f"v_lshlrev_b32 v{72+2*i}, 16, v{16+i}\nv_and_b32 v{73+2*i}, 0xffff0000, v{16+i}")
for i in range(4): pk("add", 80+2*i, vr(64+2*i,2), "v[12:13]", None, "op_sel_hi:[1,0] neg_lo:[0,1] neg_hi:[0,1]")
for i in range(4): pk("mul", 80+2*i, vr(80+2*i,2), "v[12:13]", None, "op_sel:[0,1] op_sel_hi:[1,1]")
for i in range(4): pk("fma", 64+2*i, vr(80+2*i,2), vr(72+2*i,2), vr(64+2*i,2))
A("s_waitcnt lgkmcnt(0)")
for i in range(4): pk("add", 32+2*i, vr(32+2*i,2), vr(40+2*i,2)); pk("add", 48+2*i, vr(48+2*i,2), vr(56+2*i,2))
for i in range(4): pk("add", 64+2*i, vr(64+2*i,2), vr(32+2*i,2))
for i in range(4): pk("add", 64+2*i, vr(64+2*i,2), vr(48+2*i,2))
for i in range(4): A(f"v_cvt_pk_bf16_f32 v{4+i}, v{64+2*i}, v{65+2*i}")
A(f"buffer_store_dwordx4 v[4:7], v26, s[{R_A}:{R_A+3}], 0 offen")
if STAMPS:
    stamp(6)
    srd(A, R_B, P_WS, 268435456)
    A(f"""s_lshl_b32 s{T}, s2, 3
s_add_u32 s{T}, s{T}, s{S_WAVE}
s_lshl_b32 s{T}, s{T}, 8
s_add_u32 s{T}, s{T}, {STAMP_OFF}
v_lshlrev_b32 v2, 2, v2
buffer_store_dword v0, v2, s[{R_B}:{R_B+3}], s{T} offen""")
A("s_endpgm")
```

```python
from k4b import *
A("L_prep:")
q = VQ()
A("v_lshrrev_b32 v4, 3, v2\nv_and_b32 v5, 7, v2")
srd(A, R_B, P_Q, 2048 * 512 * 2)
A(f"""s_lshl_b32 s8, s{S_XCD}, 2
s_add_u32 s8, s8, s{S_IDX}
s_lshl_b32 s14, s8, 16
s_lshl_b32 s{T+1}, s{S_WAVE}, 13
s_add_u32 s14, s14, s{T+1}
v_lshlrev_b32 v15, 10, v4
v_lshl_add_u32 v15, v5, 4, v15
s_nop 0""")
srd(A, R_C, P_K, 2048 * 512 * 2); srd(A, R_D, P_V, 2048 * 512 * 2); srd(A, R_A, P_SH, 4096)
A(f"""s_lshl_b32 s{T}, s8, 16
v_lshl_add_u32 v8, v2, 4, s14
v_add_u32 v9, 4096, v8
v_subrev_u32 v10, 3072, v8
v_subrev_u32 v11, 2048, v8
v_subrev_u32 v12, 1024, v8
v_lshlrev_b32 v13, 6, v2
s_mov_b32 s{T}, 0""")
for n in range(4): A(f"buffer_load_dwordx4 {vr(204+4*n,4)}, v13, s[{R_A}:{R_A+3}], s{T} offen offset:{16*n}")
for n in range(3): A(f"buffer_load_dwordx4 {vr(128+4*n,4)}, v{10+n}, s[{R_C}:{R_C+3}], 0 offen")
for n in range(8):
    A(f"buffer_load_dwordx4 {vr(140+4*n,4)}, v{8+(n>>2)}, s[{R_C}:{R_C+3}], 0 offen offset:{1024*(n&3)} {opt('polk','')}")
    A(f"buffer_load_dwordx4 {vr(172+4*n,4)}, v{8+(n>>2)}, s[{R_D}:{R_D+3}], 0 offen offset:{1024*(n&3)} {opt('polk','')}")
A(f"""s_waitcnt vmcnt(19)""")
for c in range(8):
    for hh in range(2):
        A(f"v_lshlrev_b32 v{32+(2*hh)*8+c}, 16, v{204+2*c+hh}\nv_and_b32 v{32+(2*hh+1)*8+c}, 0xffff0000, v{204+2*c+hh}")
def unp(d, s):
    for i in range(4): A(f"v_lshlrev_b32 v{d+2*i}, 16, v{s+i}\nv_and_b32 v{d+2*i+1}, 0xffff0000, v{s+i}")
KR = lambda r: 220 + 8 * (r & 3)
A('s_waitcnt vmcnt(16)')
for r in range(3): unp(KR(r), 128 + 4 * r)
for t in range(8):
    A(f's_waitcnt vmcnt({14-2*t})')
    unp(KR(t + 3), 128 + 4 * (t + 3)); unp(16, 172 + 4 * t)
    R = 64 + 8 * t
    for i in range(4): pk("mul", R+2*i, vr(KR(t)+2*i,2), vr(32+24+2*i,2))
    for tau in (2, 1, 0):
        for i in range(4): pk("fma", R+2*i, vr(KR(t+3-tau)+2*i,2), vr(32+8*tau+2*i,2), vr(R+2*i,2))
    for i in range(4): pk("mul", R+2*i, vr(R+2*i,2), vr(16+2*i,2))
stamp(8)
A(f"""s_and_b32 s9, s{S_XCD}, 3
s_lshl_b32 s9, s9, 3
s_and_b32 s{T}, s{S_XCD}, 4
s_add_u32 s9, s9, s{T}
s_add_u32 s9, s9, s{S_IDX}
s_lshl_b32 s14, s9, 16
s_lshl_b32 s{T+1}, s{S_WAVE}, 13
s_add_u32 s14, s14, s{T+1}""")
for n in range(8): A(f"buffer_load_dwordx4 {vr(192+4*n,4)}, v15, s[{R_B}:{R_B+3}], s14 offen offset:{128*n}")
tag_load(VT + 2)
A(f"""s_lshl_b32 s{T}, s{S_WAVE}, 13
s_add_u32 s{T}, s{T}, 32768
v_xor_b32 v6, s{S_WAVE}, v5
v_lshlrev_b32 v6, 4, v6
v_lshl_add_u32 v6, v2, 10, v6
v_add_u32 v6, 32768, v6
v_lshl_add_u32 v7, v2, 4, s{T}""")
for c in range(8):
    for i in range(4): A(f"v_cvt_pk_bf16_f32 v{128+4*c+i}, v{64+8*(7-2*i)+c}, v{64+8*(6-2*i)+c}")
    A(f"ds_write_b128 v6, {vr(128+4*c,4)} offset:{128*c}")
A("s_waitcnt lgkmcnt(0)\ns_barrier")
for n in range(8): A(f"v_xor_b32 v8, {16*n}, v7\nds_read_b128 {vr(160+4*n,4)}, v8 offset:{1024*n}")
A(f"""v_lshlrev_b32 v8, 4, v2
s_lshl_b32 s{T+1}, s{S_WAVE}, 13
s_mul_i32 s{T+2}, s8, {KVS}
s_add_u32 s{T+1}, s{T+1}, s{T+2}
s_add_u32 s{T+1}, s{T+1}, {WS_KV}
s_lshl_b32 s13, s{S_WAVE}, 5
s_add_u32 s13, s13, s8
s_lshl_b32 s42, s13, {FS}
s_add_u32 s42, s42, {WS_FK}""")
for n in range(8):
    A(f"s_waitcnt lgkmcnt({7-n})\nbuffer_store_dwordx4 {vr(160+4*n,4)}, v8, s[{R_WS}:{R_WS+3}], s{T+1} offen sc1\ns_add_u32 s{T+1}, s{T+1}, 1024")
A("v_mov_b32 v14, 0\nv_mov_b32 v15, 0\ns_mov_b32 s12, 0x3f803f80\ns_waitcnt vmcnt(0)")
stamp(9)
for i in range(32): A(f"v_dot2_f32_bf16 v14, v{192+i}, s12, v14\nv_dot2_f32_bf16 v15, v{192+i}, v{192+i}, v15")
for d in ("quad_perm:[1,0,3,2]", "quad_perm:[2,3,0,1]", "row_half_mirror"):
    A(f"s_nop 1\nv_add_f32_dpp v14, v14, v14 {d} row_mask:0xf bank_mask:0xf\nv_add_f32_dpp v15, v15, v15 {d} row_mask:0xf bank_mask:0xf")
ln_stats(14, 15)
A(f"""s_lshl_b32 s13, s9, 3
s_add_u32 s13, s13, s{S_WAVE}
s_lshl_b32 s13, s13, 6
s_add_u32 s13, s13, {WS_ST}
v_lshlrev_b32 v16, 3, v4
buffer_store_dwordx2 v[14:15], v16, s[{R_WS}:{R_WS+3}], s13 offen sc1""")
tag_check(VT + 2)
A("s_waitcnt vmcnt(0)")
A("s_barrier")
publish(42)
stamp(1)
A(f"""s_cmp_lt_u32 s{S_WAVE}, 4
s_cbranch_scc1 L_g2""")
h_loads(VQ()); wd_setup()
for s_ in range(6):
    for x in ldD(s_): A(x)
fk_poll_load(); A("s_waitcnt vmcnt(0)"); poll_check(8, 42, VT + 2); u_loads(); A("s_waitcnt vmcnt(0)")
A("s_branch L_ph2aux\nL_end:")
open(OUT, "w").write(module(["; @launch grid=(256,1,1) block=(512,1,1) lds=163840\n"], [kernel(KN, A.text())]))
```

```python
from k4a import *
def x_load():
    srd(A, R_B, P_Q, 2048 * 512 * 2)
    A(f"""s_and_b32 s{T}, s{S_WAVE}, 3
s_lshl_b32 s{T}, s{T}, 14
s_lshl_b32 s{T+1}, s76, 16
s_add_u32 s{T}, s{T}, s{T+1}
s_lshr_b32 s{T+1}, s{S_WAVE}, 2
s_lshl_b32 s{T+1}, s{T+1}, 6
s_add_u32 s{T}, s{T}, s{T+1}
s_lshl_b32 s{T+1}, s77, 7
s_add_u32 s{T}, s{T}, s{T+1}
v_lshlrev_b32 v26, 10, v3
v_lshl_add_u32 v26, v1, 4, v26
v_add_u32 v26, s{T}, v26
buffer_load_dwordx4 v[4:7], v26, s[{R_B}:{R_B+3}], 0 offen""")
q = VQ()
A(f"""s_lshl_b32 s{T}, s10, 9
s_lshl_b32 s{T+1}, s11, 8
s_add_u32 s{T}, s{T}, s{T+1}
s_add_u32 s{T}, s{T}, {L_M}
v_lshl_add_u32 v4, v3, 3, s{T}
v_xor_b32 v5, 256, v4
s_lshl_b32 s{T}, s10, 7
s_add_u32 s{T}, s{T}, s{T+1}
s_add_u32 s{T}, s{T}, {L_M + 1024}
v_lshl_add_u32 v6, v1, 4, s{T}
v_xor_b32 v7, 128, v6
v_mov_b32 v8, {L_TAG}
ds_write_b128 v6, v[16:19]
ds_write_b128 v6, v[20:23] offset:64
ds_write_b128 v6, v[24:27] offset:512
ds_write_b128 v6, v[28:31] offset:576
s_waitcnt lgkmcnt(0)
s_barrier
ds_read_b64 v[14:15], v8""")
stamp(7)
for t in range(4): A(f"ds_read_b64 {vr(16+2*t,2)}, v{4+(t>>1)} offset:{(t&1)*128}")
for j in range(8): A(f"ds_read_b128 {vr(32+4*j,4)}, v{6+((j>>1)&1)} offset:{(j>>2)*512+(j&1)*64}")
C1 = -2 * math.sqrt(2 / math.pi) * math.log2(math.e); C2 = C1 * 0.044715
A(f"""s_mov_b32 s86, {f2u(C1)}
s_mov_b32 s87, {f2u(C1)}
v_mov_b32 v8, {f2u(C2)}
v_mov_b32 v9, {f2u(C2)}
s_lshl_b32 s{T}, s8, 3
s_lshl_b32 s{T+1}, s10, 2
s_add_u32 s{T}, s{T}, s{T+1}
s_mul_i32 s{T}, s{T}, 56
s_lshl_b32 s{T+1}, s9, 2
s_add_u32 s{T}, s{T}, s{T+1}
s_lshl_b32 s{T+1}, s11, 1
s_add_u32 s{T}, s{T}, s{T+1}
s_lshl_b32 s85, s{T}, 10
s_mul_i32 s{T}, s11, {2*56*1024}
s_sub_u32 s84, s85, s{T}
s_add_u32 s84, s84, {2*56*1024}
s_add_u32 s85, s85, s{T}
s_lshl_b32 s{T}, s10, 10
v_lshl_add_u32 v26, v2, 4, s{T}
v_xor_b32 v27, 1024, v26
s_waitcnt lgkmcnt(0)
v_readfirstlane_b32 s{S_TAG}, v14
v_readfirstlane_b32 s{S_TAG+1}, v15""")
for t in range(4): A(f"v_rcp_f32 v{10+t}, v{17+2*t}")
VAR = opt("var", 0); NP = "s_nop 3\n" if VAR & 2 else ""
def pk(op, d, a, b, c=None, mods=""):
    A(f"v_pk_{op}_f32 {vr(d,2)}, {a}, {b}" + (f", {c}" if c else "") + " " + mods)
for t in range(4):
    st = vr(16 + 2 * t, 2)
    for jp in range(2):
        o = 64 + ((t * 2 + jp) & 1) * 4 ; tm = 80
        prs = [(2 * jp + jj, p) for jj in range(2) for p in range(2)]
        G = [acc(j, t) + 2 * p for j, p in prs]; U = [acc(j + 4, t) + 2 * p for j, p in prs]
        for i, (j, p) in enumerate(prs): pk("fma", G[i], vr(32+4*j+2*p,2), st, vr(G[i],2), "op_sel_hi:[1,0,1] neg_lo:[0,1,0] neg_hi:[0,1,0]")
        for i in range(4):
            if VAR & 1: A(f"v_mul_f32 v{G[i]}, v{G[i]}, v{17+2*t}\nv_mul_f32 v{G[i]+1}, v{G[i]+1}, v{17+2*t}")
            else: pk("mul", G[i], vr(G[i],2), st, None, "op_sel:[0,1] op_sel_hi:[1,1]")
        for i in range(4): pk("mul", tm+2*i, vr(G[i],2), vr(G[i],2))
        for i in range(4): pk("fma", tm+2*i, vr(tm+2*i,2), "v[8:9]", "s[86:87]")
        for i in range(4): pk("mul", tm+2*i, vr(tm+2*i,2), vr(G[i],2))
        for i, (j, p) in enumerate(prs):
            A(f"v_exp_f32 v{tm+2*i}, v{tm+2*i}\n{NP}v_exp_f32 v{tm+2*i+1}, v{tm+2*i+1}")
            pk("fma", U[i], vr(48+4*j+2*p,2), st, vr(U[i],2), "op_sel_hi:[1,0,1] neg_lo:[0,1,0] neg_hi:[0,1,0]")
        for i in range(8): A(f"v_fma_f32 v{tm+i}, v{tm+i}, v{10+t}, v{10+t}")
        for i in range(4):
            A(f"v_rcp_f32 v{tm+2*i}, v{tm+2*i}\n{NP}v_rcp_f32 v{tm+2*i+1}, v{tm+2*i+1}")
            pk("mul", G[i], vr(G[i],2), vr(U[i],2))
        for i in range(4): pk("mul", G[i], vr(G[i],2), vr(tm+2*i,2))
        for i in range(4): A(f"v_cvt_pk_bf16_f32 v{o+i}, v{G[i]}, v{G[i]+1}")
        A(f"s_add_u32 s{T}, s{85-(t>>1)}, {(t&1)*56*1024}\nbuffer_store_dwordx4 {vr(o,4)}, v{26+jp}, s[{R_WS}:{R_WS+3}], s{T} offen sc1")
A(f"""s_lshl_b32 s{T}, s8, 1
s_add_u32 s{T}, s{T}, s10
s_lshl_b32 s{T}, s{T}, 5
s_lshl_b32 s{T+1}, s9, 1
s_add_u32 s{T}, s{T}, s{T+1}
s_add_u32 s{T}, s{T}, s11
s_lshl_b32 s{T}, s{T}, {FS}
s_add_u32 s85, s{T}, {WS_FH}""")
if not opt("pubfirst", 1): A("s_barrier")
stamp(2, 0)
A("s_waitcnt vmcnt(0)")
publish(85)
if opt("pubfirst", 1): A("s_barrier")
stamp(3, 0)
A("s_branch L_g2b\nL_g2:\ns_barrier\ns_barrier\nL_g2b:")
wd_setup()
A(f"""v_min_u32 v8, 6, v2
v_lshlrev_b32 v8, {FS}, v8
s_lshl_b32 s{T}, s76, {5+FS}
s_mul_i32 s{T+1}, s{S_WAVE}, {7<<FS}
s_add_u32 s{T}, s{T}, s{T+1}
s_add_u32 s85, s{T}, {WS_FH}
v_lshlrev_b32 v27, 4, v2
v_lshrrev_b32 v9, 2, v3
v_lshl_add_u32 v9, v1, 2, v9
v_bfe_u32 v10, v9, 1, 2
v_lshlrev_b32 v9, 7, v9
v_lshl_add_u32 v9, v10, 5, v9
v_and_b32 v10, 3, v3
v_lshl_add_u32 v9, v10, 3, v9""")
for i in range(4): A(f"v_xor_b32 v{10+i}, {32*i}, v9\nv_add_u32 v{10+i}, s83, v{10+i}\nv_add_u32 v{14+i}, 65536, v{10+i}")
A(f"""s_mul_i32 s{T+1}, s76, {4*56*1024}
s_mul_i32 s86, s{S_WAVE}, {14*1024}
s_add_u32 s86, s86, s{T+1}""")
for t in range(1, 4): A(f"s_add_u32 s{86+t}, s86, {t*56*1024}")
NPRE = opt("npre", 5)
free = [32 + 16 * i for i in range(10)]; HB = {}; WB = {}
def ldH(s):
    r = []; HB[s] = free.pop(0); q.add(f"h{s}", 4)
    for t in range(4):
        pre = f"s_add_u32 s{86+t}, s{86+t}, 4096\n" if s % 4 == 0 and s > 0 else ""
        r.append(pre + f"buffer_load_dwordx4 {vr(HB[s]+4*t,4)}, v27, s[{R_WS}:{R_WS+3}], s{86+t} offen offset:{(s%4)*1024} {opt('polh','sc1')}")
    return r
def rdD(s):
    o = slot(s); r = []; WB[s] = free.pop(0)
    for dt in range(4):
        for h in range(2): r.append(f"ds_read_b64_tr_b16 {vr(WB[s]+4*dt+2*h,2)}, v{10+dt+4*(o>>16)} offset:{(o&65535)+h*2048}")
    return r
for s in range(NPRE):
    for x in rdD(s): A(x)
    A("s_waitcnt lgkmcnt(0)")
    for x in ldD(s + 6): A(x)
x_load()
poll(8, 85, VT)
stamp(4, 0)
nh = 0; nd = NPRE + 6
while free:
    for x in ldH(nh): A(x)
    nh += 1
for s in range(14):
    q.wait(f"h{s}", f"d{s+1}")
    if s >= NPRE: A("s_waitcnt lgkmcnt(0)")
    ext = []
    if s >= 1: free += [HB[s - 1], WB[s - 1]]
    if NPRE <= s + 1 < 14: ext += rdD(s + 1)
    while free and nh < 14: ext += ldH(nh); nh += 1
    if s >= NPRE and nd < 14: ext += ldD(nd); q.add(f"d{nd}", 4); nd += 1
    for dt in range(4):
        for t in range(4):
            mfma(192 + (dt * 4 + t) * 4, WB[s] + 4 * dt, HB[s] + 4 * t, "0" if s == 0 else None)
            if ext: A(ext.pop(0))
    assert not ext
A(f"""v_xor_b32 v9, v1, v3
v_lshlrev_b32 v9, 4, v9
v_lshl_add_u32 v9, v3, 8, v9
v_add_u32 v9, s83, v9
v_xor_b32 v10, 64, v9
v_xor_b32 v11, 128, v9
v_xor_b32 v12, 192, v9
s_nop 4""")
for dt in range(4):
    for t in range(4): A(f"ds_write_b128 v{9+dt}, {vr(192+(dt*4+t)*4,4)} offset:{t*16384}")
stamp(5, 0)
A("s_branch L_fin")

A("L_ph2aux:")
if opt("pfd", 0):
    A(f"""s_and_b32 s{T}, s{S_IDX}, 3
s_lshl_b32 s{T}, s{T}, 16
s_add_u32 s{T}, s{T}, s82
s_add_u32 s{T}, s{T}, {192*1024}
v_lshlrev_b32 v8, 10, v2
buffer_load_dword v113, v8, s[{R_W}:{R_W+3}], s{T} offen""")
A("s_barrier")
if opt("late", 0): A("L_ph2b:")
A(f"""s_bfe_u32 s{T}, s{S_WAVE}, 0x10001
s_mul_i32 s{T}, s{T}, {CH_SZ}
s_add_u32 s82, s{T}, {L_CV}
s_lshl_b32 s{T}, s90, 11
s_add_u32 s{T}, s{T}, s82
v_lshl_add_u32 v9, v2, 4, s{T}
v_mov_b32 v12, 0
v_mov_b32 v13, 0
v_lshl_add_u32 v10, v2, 3, s82
ds_write_b64 v10, v[12:13] offset:{4*4160}
s_cmp_lg_u32 s90, 0
s_cbranch_scc1 L_nohead
v_readfirstlane_b32 s{T}, v64
v_readfirstlane_b32 s{T+1}, v65
v_and_b32 v10, 3, v2
v_lshlrev_b32 v11, 4, v10
v_sub_u32 v11, 48, v11
v_mul_u32_u24 v10, 4160, v10
v_add_u32 v10, s82, v10
v_lshlrev_b64 v[14:15], v11, s[{T}:{T+1}]
v_lshlrev_b64 v[14:15], 16, v[14:15]
ds_write_b64 v10, v[12:13]
ds_write_b64 v10, v[12:13] offset:8
ds_write_b128 v10, v[12:15] offset:16
s_branch L_head
L_nohead:
v_mov_b32 v112, 0
L_head:""")
for n in range(2):
    b = 64 + 12 * n
    for i in range(4): A(f"v_alignbit_b32 v{16+i}, v{b+4+i}, v{b+i}, 16\nv_alignbit_b32 v{20+i}, v{b+8+i}, v{b+4+i}, 16")
    for c, r in enumerate([b, 16, b + 4, 20]): A(f"ds_write_b128 v9, {vr(r,4)} offset:{c*4160+32+n*1024}")
    A("s_nop 0")
A(f"""v_lshlrev_b32 v8, 3, v2
v_add_u32 v8, {L_ST2}, v8
ds_write_b64 v8, v[122:123]
ds_write_b128 v9, v[114:117] offset:{4*4160+512}
ds_write_b128 v9, v[118:121] offset:{4*4160+512+1024}""")
x_load()
A(f"""v_add_u32 v10, 1, v3
v_and_b32 v11, 3, v10
v_mul_u32_u24 v11, 4160, v11
v_lshrrev_b32 v10, 2, v10
v_lshl_add_u32 v10, v10, 3, v11
v_lshl_add_u32 v10, v1, 4, v10
s_lshl_b32 s{T+1}, s90, 8
s_add_u32 s{T}, s82, s{T+1}
v_add_u32 v10, s{T}, v10
v_add_u32 v11, 2048, v10
v_lshlrev_b32 v12, 5, v3
v_lshlrev_b32 v13, 4, v1
v_sub_u32 v12, v12, v13
s_add_u32 s{T}, s82, {4*4160+512+16}
s_sub_u32 s{T}, s{T}, s{T+1}
v_add_u32 v12, s{T}, v12
v_lshl_add_u32 v13, v1, 3, v3
v_sub_u32 v13, 15, v13
v_and_b32 v14, 1, v13
v_lshlrev_b32 v14, 4, v14
v_lshlrev_b32 v14, v14, v112
v_ashrrev_i32 v13, 1, v13""")
for r in range(4): A(f"v_cmp_eq_u32 vcc, {r}, v13\nv_cndmask_b32 v{16+r}, 0, v14, vcc")
CB = [(32, 64), (160, 192)]
def cv_reads(p):
    r = []
    for i in range(8):
        r.append(f"ds_read_b128 {vr(CB[p][1]+4*i,4)}, v12 offset:{512*i}")
        if opt("rd2", 0): r.append(f"ds_read2_b64 {vr(CB[p][0]+4*i,4)}, v{10+(i>>2)} offset0:{64*(i&3)} offset1:{64*(i&3)+1}")
        else: r += [f"ds_read_b64 {vr(CB[p][0]+4*i+2*h,2)}, v10 offset:{512*i+8*h}" for h in range(2)]
    return r
stamp(2)
A("s_waitcnt vmcnt(0) lgkmcnt(0)\ns_barrier")
stamp(7)
for x in cv_reads(0): A(x)
A("s_mov_b32 s83, 0\ns_waitcnt lgkmcnt(0)")
for c in range(8): mfma(128 + 4 * c, 16, 64 + 4 * c, "0")
A("L_cvloop:")
for p in range(2):
    A("v_add_u32 v10, 64, v10\nv_add_u32 v11, 64, v11\nv_subrev_u32 v12, 64, v12\ns_waitcnt lgkmcnt(0)")
    ext = cv_reads(1 - p)
    for a in range(8):
        for m in range(8 - a):
            mfma(128 + 4 * (a + m), CB[p][0] + 4 * a, CB[p][1] + 4 * m)
            if ext: A(ext.pop(0))
A(f"""s_add_u32 s83, s83, 1
s_cmp_lt_u32 s83, 2
s_cbranch_scc1 L_cvloop
s_lshl_b32 s84, s{S_WAVE}, 12
s_add_u32 s84, s84, {L_EX - 4*4096}
v_lshl_add_u32 v9, v2, 4, s84
v_xor_b32 v10, 4096, v9
s_lshl_b32 s{T}, s{S_WAVE}, 2
s_add_u32 s{T}, s{T}, {L_PF}
v_mov_b32 v11, s{T}
v_xor_b32 v12, 4, v11
s_cmp_eq_u32 s90, 0
s_cbranch_scc1 L_noswap""")
for i in range(16): A(f"v_swap_b32 v{128+i}, v{144+i}")
A("L_noswap:")
for c in range(4): A(f"ds_write_b128 v10, {vr(144+4*c,4)} offset:{1024*c}")
A(f"""s_waitcnt lgkmcnt(0)
ds_write_b32 v12, v11
s_mov_b32 s{T}, {SPIN}
L_pair:
ds_read_b32 v13, v11
s_sub_u32 s{T}, s{T}, 1
s_waitcnt lgkmcnt(0)
v_readfirstlane_b32 s{T+1}, v13
s_cmp_eq_u32 s{T}, 0
s_cbranch_scc1 L_paird
s_cmp_eq_u32 s{T+1}, 0
s_cbranch_scc1 L_pair
L_paird:""")
for c in range(4): A(f"ds_read_b128 {vr(144+4*c,4)}, v9 offset:{1024*c}")
A(f"""s_lshl_b32 s{T}, s43, 12
s_lshl_b32 s{T+1}, s90, 11
s_add_u32 s{T}, s{T}, s{T+1}
s_add_u32 s{T}, s{T}, {WS_Y}
v_lshlrev_b32 v8, 5, v3
v_lshl_add_u32 v8, v1, 3, v8
s_lshl_b32 s42, s90, 9
s_add_u32 s42, s42, s43
s_lshl_b32 s42, s42, {FS}
s_add_u32 s42, s42, {WS_FY}""")
for c in range(4):
    A(f"s_waitcnt lgkmcnt({3-c})")
    for i in range(4): A(f"v_add_f32 v{128+4*c+i}, v{128+4*c+i}, v{144+4*c+i}")
    A(f"""v_cvt_pk_bf16_f32 v{96+2*c}, v{128+4*c}, v{129+4*c}
v_cvt_pk_bf16_f32 v{97+2*c}, v{130+4*c}, v{131+4*c}
buffer_store_dwordx2 {vr(96+2*c,2)}, v8, s[{R_WS}:{R_WS+3}], s{T} offen offset:{512*c} sc1""")
stamp(3, 4)
A("s_waitcnt vmcnt(0)")
publish(42)
stamp(4, 4)
A(f"""s_lshr_b32 s42, s76, 4
s_lshl_b32 s42, s42, 9
s_lshl_b32 s{T}, s77, 6
s_lshl_b32 s{T+1}, s{S_WAVE}, 4
s_add_u32 s85, s{T}, s{T+1}
s_sub_u32 s85, s85, 64
s_add_u32 s42, s42, s85
s_lshl_b32 s42, s42, {FS}
s_add_u32 s42, s42, {WS_FY}
v_lshlrev_b32 v8, {FS}, v3
v_lshrrev_b32 v10, 3, v2
v_and_b32 v11, 7, v2
v_lshlrev_b32 v10, 12, v10
v_lshl_add_u32 v10, v11, 4, v10
s_lshl_b32 s85, s85, 12
s_lshl_b32 s{T+1}, s76, 7
s_add_u32 s85, s85, s{T+1}
s_add_u32 s85, s85, {WS_Y}
s_add_u32 s86, s85, 32768""")
poll(8, 42, VT)
A(f"""buffer_load_dwordx4 v[32:35], v10, s[{R_WS}:{R_WS+3}], s85 offen sc1
buffer_load_dwordx4 v[36:39], v10, s[{R_WS}:{R_WS+3}], s86 offen sc1
s_waitcnt vmcnt(1)
ds_write_b128 v9, v[32:35]
s_waitcnt vmcnt(0)
ds_write_b128 v9, v[36:39] offset:1024""")
stamp(5)
A(f"""L_fin:
s_and_b32 s82, s{S_WAVE}, 3
s_lshr_b32 s83, s{S_WAVE}, 2
s_lshl_b32 s{T}, s83, 3
v_lshl_add_u32 v8, v1, 1, s{T}
v_xor_b32 v8, v8, v3
v_lshlrev_b32 v8, 4, v8
v_lshl_add_u32 v8, v3, 8, v8
s_lshl_b32 s{T}, s82, 14
v_add_u32 v8, s{T}, v8
v_xor_b32 v9, 16, v8
s_lshl_b32 s{T}, s82, 7
s_add_u32 s{T}, s{T}, {L_ST2}
v_lshl_add_u32 v10, v3, 3, s{T}
v_lshrrev_b32 v11, 2, v3
v_and_b32 v12, 1, v1
v_lshl_add_u32 v11, v12, 3, v11
v_lshlrev_b32 v11, 7, v11
v_lshrrev_b32 v12, 1, v1
v_lshl_add_u32 v11, v12, 12, v11
v_and_b32 v12, 3, v3
v_lshl_add_u32 v11, v12, 3, v11
s_lshl_b32 s{T}, s83, 13
s_lshl_b32 s{T+1}, s82, 5
s_add_u32 s{T}, s{T}, s{T+1}
s_add_u32 s{T}, s{T}, {L_EX}
v_add_u32 v11, s{T}, v11
s_waitcnt vmcnt(0) lgkmcnt(0)
s_barrier
ds_read_b64 v[12:13], v10
ds_read_b64_tr_b16 v[16:17], v11
ds_read_b64_tr_b16 v[18:19], v11 offset:512""")
for w in range(4): A(f"ds_read_b128 {vr(32+8*w,4)}, v8 offset:{w*4096}\nds_read_b128 {vr(36+8*w,4)}, v9 offset:{w*4096}")
srd(A, R_A, P_OUT, 2048 * 512 * 2)
for i in range(4): A(f"v_lshlrev_b32 v{64+2*i}, 16, v{4+i}\nv_and_b32 v{65+2*i}, 0xffff0000, v{4+i}")
A("s_waitcnt lgkmcnt(8)")
for i in range(4): A(f"v_lshlrev_b32 v{72+2*i}, 16, v{16+i}\nv_and_b32 v{73+2*i}, 0xffff0000, v{16+i}")
for i in range(4): pk("add", 80+2*i, vr(64+2*i,2), "v[12:13]", None, "op_sel_hi:[1,0] neg_lo:[0,1] neg_hi:[0,1]")
for i in range(4): pk("mul", 80+2*i, vr(80+2*i,2), "v[12:13]", None, "op_sel:[0,1] op_sel_hi:[1,1]")
for i in range(4): pk("fma", 64+2*i, vr(80+2*i,2), vr(72+2*i,2), vr(64+2*i,2))
A("s_waitcnt lgkmcnt(0)")
for i in range(4): pk("add", 32+2*i, vr(32+2*i,2), vr(40+2*i,2)); pk("add", 48+2*i, vr(48+2*i,2), vr(56+2*i,2))
for i in range(4): pk("add", 64+2*i, vr(64+2*i,2), vr(32+2*i,2))
for i in range(4): pk("add", 64+2*i, vr(64+2*i,2), vr(48+2*i,2))
for i in range(4): A(f"v_cvt_pk_bf16_f32 v{4+i}, v{64+2*i}, v{65+2*i}")
A(f"buffer_store_dwordx4 v[4:7], v26, s[{R_A}:{R_A+3}], 0 offen")
if STAMPS:
    stamp(6)
    srd(A, R_B, P_WS, 268435456)
    A(f"""s_lshl_b32 s{T}, s2, 3
s_add_u32 s{T}, s{T}, s{S_WAVE}
s_lshl_b32 s{T}, s{T}, 8
s_add_u32 s{T}, s{T}, {STAMP_OFF}
v_lshlrev_b32 v2, 2, v2
buffer_store_dword v0, v2, s[{R_B}:{R_B+3}], s{T} offen""")
if STAMPS and opt("dbg", 0):
    A(f"""s_cmp_lg_u32 s2, {opt("dbg", 0)}
s_cbranch_scc1 L_end
v_subrev_u32 v0, s{S_TAG}, v0
s_cmp_eq_u32 s{S_WAVE}, 0
s_cbranch_scc0 L_dbg4
s_mov_b64 exec, 0x7f
buffer_store_dword v0, v2, s[{R_DBG}:{R_DBG+3}], 0 offen offset:8
s_endpgm
L_dbg4:
s_cmp_eq_u32 s{S_WAVE}, 4
s_cbranch_scc0 L_end
s_mov_b64 exec, 0xf00
buffer_store_dword v0, v2, s[{R_DBG}:{R_DBG+3}], 0 offen offset:16
s_mov_b64 exec, 0xa
buffer_store_dword v0, v2, s[{R_DBG}:{R_DBG+3}], 0 offen offset:32""")
A("s_endpgm")
```

```python
from gen import *
import sys, math, struct
STAMPS = "--stamps" in sys.argv
OUT = [a for a in sys.argv[1:] if a.endswith(".s")][0]
def opt(name, dflt):
    for a in sys.argv:
        if a.startswith(f"--{name}="): return type(dflt)(a.split("=")[1])
    return dflt
A = Asm()
WS_H = 0; WS_KV = 14 << 20; WS_Y = 10 << 20; WS_ST = 12 << 20; KVS = 65536 + 768; WS_CS = (12 << 20) + 65536
FS = opt("fs", 7)
WS_FH = 13 << 20; WS_FK = WS_FH + (1024 << FS); WS_FY = WS_FK + (256 << FS)
SLP = opt("slp", 4)
WS_SZ = 17 << 20
STAMP_OFF = 200 << 20
SPIN = 200000
L_X = 98304; L_M = 159744
L_TAG = L_M + 2048; L_ST2 = L_M + 2560
L_CV = 98304; CH_SZ = 21248; L_EX = 140800; L_PF = L_M + 3072; RING = 24576
S_WAVE = 3; S_XCD = 4; S_IDX = 5; S_TAG = 6
P_Q, P_K, P_V, P_SH, P_H, P_D, P_BX, P_WG = 16, 18, 20, 22, 24, 26, 28, 30
P_WU, P_WD, P_OUT, P_DBG, P_WS = 32, 34, 36, 38, 40
R_WS = 44; R_A = 48; R_B = 52; R_C = 56; R_D = 60; R_DBG = 64
T = 68
VT = 28
def f2u(x): return struct.unpack("<I", struct.pack("<f", x))[0]
class VQ:
    def __init__(s): s.q = []
    def add(s, tag, n=1): s.q += [tag] * n
    def wait(s, *tags):
        idx = [i for i, t in enumerate(s.q) if t in tags]
        if not idx: return
        n = len(s.q) - 1 - idx[-1]; assert n < 64
        A(f"s_waitcnt vmcnt({n})"); s.q = s.q[idx[-1] + 1:]
def stamp(i, wave=0):
    if not STAMPS: return
    A(f"""s_memrealtime s[96:97]
s_waitcnt lgkmcnt(0)
v_writelane_b32 v0, s96, {i}""")
def tag_check(vt):
    l = A.label("tag"); d = A.label("tagd")
    A(f"""s_mov_b32 s{T}, {SPIN}
{l}:
v_readfirstlane_b32 s{S_TAG}, v{vt}
v_readfirstlane_b32 s{S_TAG+1}, v{vt+1}
s_cmp_lg_u32 s{S_TAG+1}, 0
s_cbranch_scc1 {d}
s_sleep 2
buffer_load_dwordx2 v[{vt}:{vt+1}], off, s[{R_DBG}:{R_DBG+3}], 0 sc1
s_sub_u32 s{T}, s{T}, 1
s_cmp_lg_u32 s{T}, 0
s_waitcnt vmcnt(0)
s_cbranch_scc1 {l}
{d}:""")
def tag_load(vt): A(f"buffer_load_dwordx2 v[{vt}:{vt+1}], off, s[{R_DBG}:{R_DBG+3}], 0 {opt('tagpol', '')}")
def poll_load(voff, soff, vt): A(f"buffer_load_dwordx2 v[{vt}:{vt+1}], v{voff}, s[{R_WS}:{R_WS+3}], s{soff} offen sc1")
def poll_check(voff, soff, vt):
    l = A.label("pl"); d = A.label("pld")
    A(f"""s_mov_b32 s{T}, {SPIN}
{l}:
v_cmp_ne_u64 vcc, s[{S_TAG}:{S_TAG+1}], v[{vt}:{vt+1}]
s_cbranch_vccz {d}
s_sleep {SLP}""")
    poll_load(voff, soff, vt)
    A(f"""s_sub_u32 s{T}, s{T}, 1
s_cmp_lg_u32 s{T}, 0
s_waitcnt vmcnt(0)
s_cbranch_scc1 {l}
{d}:""")
def poll(voff, soff, vt):
    poll_load(voff, soff, vt); A("s_waitcnt vmcnt(0)"); poll_check(voff, soff, vt)
def publish(soff):
    A(f"""v_mov_b32 v{VT}, s{S_TAG}
v_mov_b32 v{VT+1}, s{S_TAG+1}
s_mov_b64 exec, 1
buffer_store_dwordx2 v[{VT}:{VT+1}], off, s[{R_WS}:{R_WS+3}], s{soff} sc1
s_mov_b64 exec, -1""")
def mfma(d, a, b, c=None): A(f"v_mfma_f32_16x16x32_bf16 {vr(d,4)}, {vr(a,4)}, {vr(b,4)}, {vr(d,4) if c is None else c}")
def dma(voff, r, soff, pol=""): A(f"buffer_load_dwordx4 v{voff}, s[{r}:{r+3}], s{soff} offen {pol} lds")
def h_loads(q):
    srd(A, R_C, P_H, 512 * 2048 * 2); srd(A, R_D, P_D, 1024)
    A(f"""s_lshl_b32 s43, s{S_XCD}, 5
s_add_u32 s43, s43, s{S_IDX}
s_lshl_b32 s43, s43, 1
s_bfe_u32 s{T}, s{S_WAVE}, 0x10001
s_add_u32 s43, s43, s{T}
s_and_b32 s90, s{S_WAVE}, 1
s_lshl_b32 s{T}, s43, 12
s_lshl_b32 s{T+1}, s90, 11
s_add_u32 s{T}, s{T}, s{T+1}
s_lshl_b32 s{T+1}, s43, 1
v_lshlrev_b32 v9, 4, v2""")
    for n in range(2):
        for c in range(3):
            A(f"buffer_load_dwordx4 {vr(64+12*n+4*c,4)}, v9, s[{R_C}:{R_C+3}], s{T} offen offset:{1024*n+4*c} {opt('polc','')}")
    A(f"buffer_load_ushort v112, off, s[{R_D}:{R_D+3}], s{T+1}")
    q.add("h", 7)

def fk_poll_load():
    A(f"""v_min_u32 v8, 31, v2
v_lshlrev_b32 v8, {FS}, v8
s_lshl_b32 s42, s{S_XCD}, {5+FS}
s_add_u32 s42, s42, {WS_FK}""")
    poll_load(8, 42, VT + 2)
def tile_ids():
    A(f"""s_lshl_b32 s76, s{S_XCD}, 2
s_and_b32 s77, s{S_IDX}, 3
s_add_u32 s76, s76, s77
s_lshr_b32 s77, s{S_IDX}, 2""")
R_W = 92
def wd_setup():
    srd(A, R_W, P_WD, 1792 * 512 * 2)
    A(f"""v_lshrrev_b32 v24, 3, v2
v_bfe_u32 v25, v2, 1, 2
v_xor_b32 v25, v25, v1
v_lshlrev_b32 v24, 10, v24
v_lshl_add_u32 v24, v25, 5, v24
v_and_b32 v25, 1, v2
v_lshl_add_u32 v24, v25, 4, v24
s_and_b32 s83, s{S_WAVE}, 3
s_mul_i32 s82, s83, {14*32*1024}
s_lshl_b32 s{T}, s77, 7
s_add_u32 s82, s82, s{T}
s_lshl_b32 s83, s83, 12""")
def slot(s): return [4, 5, 0, 1, 2, 3][s % 6] * 16384
def ldD(s):
    return [f"s_add_u32 m0, s83, {slot(s) + i * 1024}\ns_add_u32 s{T}, s82, {(32 * s + 8 * i) * 1024}\nbuffer_load_dwordx4 v24, s[{R_W}:{R_W+3}], s{T} offen {opt('pold', '')} lds" for i in range(4)]
def u_loads():
    A(f"""s_lshl_b32 s{T}, s43, 7
s_mul_i32 s{T+1}, s90, {16*KVS}
s_add_u32 s{T}, s{T}, s{T+1}
s_add_u32 s{T}, s{T}, {WS_KV}
s_add_u32 s{T+1}, s{T}, {8*KVS}
v_lshrrev_b32 v8, 3, v2
v_mul_u32_u24 v8, {KVS}, v8
v_and_b32 v9, 7, v2
v_lshl_add_u32 v8, v9, 4, v8
buffer_load_dwordx4 v[114:117], v8, s[{R_WS}:{R_WS+3}], s{T} offen sc1
buffer_load_dwordx4 v[118:121], v8, s[{R_WS}:{R_WS+3}], s{T+1} offen sc1
v_lshlrev_b32 v8, 3, v2
s_lshl_b32 s{T}, s76, 9
s_add_u32 s{T}, s{T}, {WS_ST}
buffer_load_dwordx2 v[122:123], v8, s[{R_WS}:{R_WS+3}], s{T} offen sc1""")
A(f"""s_cmp_ge_u32 s2, 256
s_cbranch_scc1 L_end
s_load_dwordx16 s[16:31], s[0:1], 0
s_load_dwordx8 s[32:39], s[0:1], 64
s_load_dwordx2 s[40:41], s[0:1], 96
v_lshrrev_b32 v1, 6, v0
v_and_b32 v2, 63, v0
s_and_b32 s{S_XCD}, s2, 7
v_readfirstlane_b32 s{S_WAVE}, v1
s_lshr_b32 s{S_IDX}, s2, 3
v_and_b32 v3, 15, v2
v_lshrrev_b32 v1, 4, v2
s_waitcnt lgkmcnt(0)""")
srd(A, R_WS, P_WS, WS_SZ); srd(A, R_DBG, P_DBG, 256); tile_ids()
A(f"s_lshl_b32 s{T}, s{S_WAVE}, 2\ns_add_u32 s{T}, s{T}, {L_PF}\nv_mov_b32 v4, s{T}\nv_mov_b32 v5, 0\nds_write_b32 v4, v5")
if STAMPS: A("v_mov_b32 v0, 0")
stamp(0)
A(f"""s_cmp_lg_u32 s2, 0
s_cbranch_scc1 L_notag
s_cmp_lg_u32 s{S_WAVE}, 7
s_cbranch_scc1 L_notag
s_memrealtime s[{T}:{T+1}]
s_waitcnt lgkmcnt(0)
s_or_b32 s{T+1}, s{T+1}, 0x80000000
v_mov_b32 v4, s{T}
v_mov_b32 v5, s{T+1}
s_mov_b64 exec, 1
buffer_store_dwordx2 v[4:5], off, s[{R_DBG}:{R_DBG+3}], 0 sc1
s_mov_b64 exec, -1
L_notag:
s_cmp_lt_u32 s{S_IDX}, 4
s_cbranch_scc1 L_prep
s_sub_u32 s{T}, s{S_IDX}, 4
s_and_b32 s8, s{S_XCD}, 3
s_lshl_b32 s8, s8, 2
s_and_b32 s{T+1}, s{T}, 3
s_add_u32 s8, s8, s{T+1}
s_lshr_b32 s9, s{S_XCD}, 2
s_mul_i32 s9, s9, 7
s_lshr_b32 s{T+1}, s{T}, 2
s_add_u32 s9, s9, s{T+1}
s_cmp_lt_u32 s{S_WAVE}, 4
s_cbranch_scc1 L_g1""")
q = VQ()
A(f"""s_sub_u32 s10, s{S_WAVE}, 4
s_cmp_lt_u32 s10, 2
s_cselect_b32 s{T}, s{P_WG}, s{P_WU}
s_cselect_b32 s{T+1}, s{P_WG+1}, s{P_WU+1}""")
srd(A, R_A, T, 512 * 1792 * 2); srd(A, R_B, P_Q, 2048 * 512 * 2)
A(f"""s_and_b32 s11, s10, 1
s_lshl_b32 s11, s11, 4
v_add_u32 v4, s11, v1
v_mul_u32_u24 v4, 3584, v4
v_lshrrev_b32 v5, 1, v3
v_xor_b32 v5, v5, v1
v_lshl_add_u32 v4, v5, 5, v4
v_and_b32 v5, 1, v3
v_lshl_add_u32 v4, v5, 4, v4
v_xor_b32 v5, 128, v4
v_lshrrev_b32 v6, 3, v2
v_and_b32 v7, 7, v2
v_xor_b32 v7, v7, v6
s_lshl_b32 s{T}, s10, 5
v_add_u32 v6, s{T}, v6
v_lshlrev_b32 v6, 10, v6
v_lshl_add_u32 v6, v7, 4, v6
s_lshl_b32 s12, s9, 8
s_lshl_b32 s13, s8, 17
s_lshl_b32 s14, s10, 12
s_add_u32 s15, s14, {L_X}""")
ROT = opt("rot", 1)
A(f"""s_sub_u32 s{T}, s{S_IDX}, 4
s_and_b32 s{T+1}, s{T}, 3
s_lshl_b32 s{T+1}, s{T+1}, 1
s_lshr_b32 s{T}, s{T}, 2
s_add_u32 s{T}, s{T}, s{T+1}
s_and_b32 s{T}, s{T}, {7 if ROT else 0}
s_add_u32 s80, s12, {512*3584}
s_add_u32 s81, s13, 1024
s_mul_i32 s{T+1}, s{T}, {64*3584}
s_add_u32 s12, s12, s{T+1}
s_lshl_b32 s{T+1}, s{T}, 7
s_add_u32 s13, s13, s{T+1}""")
POLW = opt("polw", ""); POLX = opt("polx", "")
def ldW(n):
    for i in range(4):
        A(f"s_add_u32 m0, s14, {(n % 6) * 16384 + i * 1024}\ns_add_u32 s{T}, s12, {(32 * (n & 1) + 4 * i) * 3584}")
        dma(4 + (i >> 1), R_A, T, POLW)
    if n & 1: A(f"s_add_u32 s12, s12, {64*3584}\ns_cmp_eq_u32 s12, s80\ns_cselect_b32 s{T}, {512*3584}, 0\ns_sub_u32 s12, s12, s{T}")
    q.add(f"w{n}", 4)
def ldX(s):
    for i in range(4):
        A(f"s_add_u32 m0, s15, {(s % 3) * 16384 + i * 1024}\ns_add_u32 s{T}, s13, {i * 8192}")
        dma(6, R_B, T, POLX)
    A(f"s_add_u32 s13, s13, 128\ns_cmp_eq_u32 s13, s81\ns_cselect_b32 s{T}, 1024, 0\ns_sub_u32 s13, s13, s{T}")
    q.add(f"x{s}", 4)
def touch():
    PW = opt("pwx", 0)
    if PW & 1:
        A(f"""s_and_b32 s{T}, s8, 3
s_lshl_b32 s{T}, s{T}, 1
s_and_b32 s{T+1}, s10, 1
s_add_u32 s{T}, s{T}, s{T+1}
s_mul_i32 s{T}, s{T}, {32*3584}
s_lshl_b32 s{T+1}, s9, 8
s_add_u32 s{T}, s{T}, s{T+1}
s_add_u32 s{T}, s{T}, {256*3584}
v_lshrrev_b32 v8, 1, v2
v_mul_u32_u24 v8, 3584, v8
v_and_b32 v9, 1, v2
v_lshl_add_u32 v8, v9, 7, v8
buffer_load_dword v113, v8, s[{R_A}:{R_A+3}], s{T} offen""")
        q.add("pw")
    if PW & 2:
        A(f"""s_sub_u32 s{T}, s{S_IDX}, 4
s_lshr_b32 s{T}, s{T}, 2
s_add_u32 s{T}, s{T}, 3
s_min_u32 s{T}, s{T}, 7
s_lshl_b32 s{T}, s{T}, 7
s_lshl_b32 s{T+1}, s8, 17
s_add_u32 s{T}, s{T}, s{T+1}
s_lshl_b32 s{T+1}, s10, 15
s_add_u32 s{T}, s{T}, s{T+1}
v_and_b32 v8, 31, v2
v_lshlrev_b32 v8, 10, v8
buffer_load_dword v113, v8, s[{R_B}:{R_B+3}], s{T} offen""")
        q.add("px")
for i_, (f_, n_) in enumerate([(ldX,0),(ldW,0),(ldW,1),(ldX,1),(ldW,2),(ldW,3),(ldX,2),(ldW,4),(ldW,5)]):
    f_(n_)
    if i_ == opt("pwp", 8): touch()
wd_setup()
NT, NK, NU = opt("nt", 5), opt("nk", 10), opt("nu", 13)
def pfw(n):
  for hf in range(2):
    if n == opt(("pf1","pf2")[hf], (6,8)[hf]):
        A(f"""s_mul_i32 s{T}, s10, {448*1024}
s_mul_i32 s{T+1}, s{S_IDX}, 8192
s_add_u32 s{T}, s{T}, s{T+1}
s_add_u32 s{T}, s{T}, {hf*224*1024 - 4*8192 & 0xffffffff}
v_lshlrev_b32 v8, 7, v2
buffer_load_dword v113, v8, s[{R_W}:{R_W+3}], s{T} offen""")
        q.add("pf")
DN = 0
for n in range(17):
    if n < 16: q.wait(f"w{n}", f"x{n//2}")
    A("s_barrier")
    if n in (0, 7, 11, 16): stamp({0:1, 7:8, 11:9, 16:11}[n])
    if STAMPS and n in (11, 16): A(f"s_memtime s[96:97]\ns_waitcnt lgkmcnt(0)\nv_writelane_b32 v0, s96, {12 + (n == 16)}")
    if n == NT: tag_load(VT); q.add("tag")
    if n == opt("nh", 5): h_loads(q)
    if not opt("pfa", 0): pfw(n)
    if n == NK: q.wait("tag"); tag_check(VT); fk_poll_load(); q.add("fk")
    if n == NU:
        q.wait("fk"); poll_check(8, 42, VT + 2); stamp(10)
        A(f"""s_lshl_b32 s{T}, s8, 10
s_add_u32 s{T}, s{T}, {WS_ST}
v_lshlrev_b32 v8, 4, v2
buffer_load_dwordx4 v[124:127], v8, s[{R_WS}:{R_WS+3}], s{T} offen sc1""")
        u_loads(); q.add("u", 4)
    if 1 <= n <= 10: ldW(n + 5)
    if n >= 2 and n % 2 == 0 and n // 2 + 2 < 8: ldX(n // 2 + 2)
    if opt("pfa", 0): pfw(n)
    while n >= opt("nd", 11) and DN <= n - 11 and ((n == 16 and not opt("late", 0)) or DN < (n - opt("nd", 11) + 1) * opt("ndr", 6)):
        for x in ldD(DN): A(x)
        q.add("d", 4); DN += 1
q.wait("u")
A(f"""v_mov_b32 v8, {L_TAG}
ds_write_b64 v8, v[{VT}:{VT+1}]
v_lshlrev_b32 v8, 4, v2
v_add_u32 v8, {L_M}, v8
ds_write_b128 v8, v[124:127]
s_waitcnt lgkmcnt(0)""")
if opt("late", 0):
    A("s_barrier")
    for s_ in range(DN, 6):
        for x in ldD(s_): A(x)
    A("s_branch L_ph2b")
else: A("s_branch L_ph2aux")

ACC = 128; FB = [32, 80]; VA_X = 8; VA_W = 12
def acc(j, t): return ACC + (j * 4 + t) * 4
A(f"""L_g1:
s_and_b32 s10, s{S_WAVE}, 1
s_lshr_b32 s11, s{S_WAVE}, 1
v_and_b32 v5, 7, v3
v_xor_b32 v5, v1, v5
v_lshlrev_b32 v5, 4, v5
v_lshl_add_u32 v5, v3, 7, v5
s_lshl_b32 s{T}, s10, 13
s_add_u32 s{T}, s{T}, {L_X}
s_lshl_b32 s{T+1}, s11, 12
s_add_u32 s{T}, s{T}, s{T+1}
v_add_u32 v{VA_X}, s{T}, v5
v_xor_b32 v{VA_X+1}, 64, v{VA_X}
v_xor_b32 v{VA_X+2}, 4096, v{VA_X}
v_xor_b32 v{VA_X+3}, 4096, v{VA_X+1}
v_lshrrev_b32 v5, 2, v3
v_lshl_add_u32 v6, v1, 3, v5
v_lshlrev_b32 v6, 8, v6
v_and_b32 v7, 1, v1
v_lshl_or_b32 v5, v7, 2, v5
s_lshl_b32 s{T}, s11, 2
s_lshl_b32 s{T+1}, s10, 1
s_or_b32 s{T}, s{T}, s{T+1}
v_xor_b32 v5, s{T}, v5
v_lshl_add_u32 v6, v5, 5, v6
v_and_b32 v7, 3, v3
v_lshl_add_u32 v{VA_W}, v7, 3, v6
v_xor_b32 v{VA_W+1}, 32, v{VA_W}
v_xor_b32 v{VA_W+2}, 64, v{VA_W}
v_xor_b32 v{VA_W+3}, 96, v{VA_W}
v_mov_b32 v4, 0
v_mov_b32 v5, 0""")
A(f"s_setprio {opt('prio', 0)}")
for i in range(64): A(f"v_pk_mul_f32 {vr(ACC+2*i,2)}, v[4:5], v[4:5]")
for i in range(8): A(f"v_pk_mul_f32 {vr(16+2*i,2)}, v[4:5], v[4:5]")
for i in range(4): A(f"v_mov_b32 v{4+i}, 0x3f803f80")
def g1_reads(buf, par):
    r = []
    for j in range(8):
        for h in range(2):
            r.append(f"ds_read_b64_tr_b16 {vr(FB[buf]+16+4*j+2*h,2)}, v{VA_W+(j&3)} offset:{(j>>2)*8192+h*1024}")
    for t in range(4): r.insert(5 * t, f"ds_read_b128 {vr(FB[buf]+4*t,4)}, v{VA_X+par+(t&2)} offset:{(t&1)*2048}")
    return r
def g1_kstep(buf, reads, pre):
    ext = list(pre) + list(reads)
    for j in range(8):
        for t in range(4):
            mfma(acc(j, t), FB[buf] + 16 + 4 * j, FB[buf] + 4 * t)
            if ext: A(ext.pop(0))
        if j in (0, 1, 4, 5): mfma(16 + 4 * (0, 1, 4, 5).index(j), FB[buf] + 16 + 4 * j, 4)
    assert not ext
A("s_barrier")
for r in g1_reads(0, 0): A(r)
A(f"s_mov_b32 s12, 0\ns_mov_b32 s13, 0\ns_mov_b32 s14, 0\ns_mov_b32 s43, 16384\nL_g1loop:")
wadv = ["s_add_u32 s12, s12, 1", "s_cmp_eq_u32 s12, 6", f"s_cselect_b32 s15, {-5*16384 & 0xffffffff}, s43", "s_cselect_b32 s12, 0, s12"]
xadv = ["s_add_u32 s14, s14, 1", "s_cmp_eq_u32 s14, 3", f"s_cselect_b32 s42, {-2*16384 & 0xffffffff}, s43", "s_cselect_b32 s14, 0, s14"]
for x in wadv: A(x)
for i in range(4): A(f"v_add_u32 v{VA_W+i}, s15, v{VA_W+i}")
A("s_waitcnt lgkmcnt(0)\ns_barrier")
g1_kstep(0, g1_reads(1, 1), [])
for x in wadv + xadv: A(x)
for i in range(4): A(f"v_add_u32 v{VA_W+i}, s15, v{VA_W+i}")
for i in range(4): A(f"v_add_u32 v{VA_X+i}, s42, v{VA_X+i}")
A("s_waitcnt lgkmcnt(0)\ns_barrier")
g1_kstep(1, g1_reads(0, 0), [])
A("s_add_u32 s13, s13, 1\ns_cmp_lt_u32 s13, 8\ns_cbranch_scc1 L_g1loop\ns_waitcnt lgkmcnt(0)")
stamp(1, 0)
def ln_stats(a, b):
    A(f"""v_mul_f32 v{a}, {f2u(1/512)}, v{a}
v_mul_f32 v{b}, {f2u(1/512)}, v{b}
v_fma_f32 v{b}, -v{a}, v{a}, v{b}
v_max_f32 v{b}, 0, v{b}
v_cvt_pk_bf16_f32 v{VT}, v{a}, v{b}
v_lshlrev_b32 v{a}, 16, v{VT}
v_and_b32 v{b}, 0xffff0000, v{VT}
v_add_f32 v{b}, {f2u(1e-5)}, v{b}
v_cvt_pk_bf16_f32 v{b}, v{b}, v{b}
v_and_b32 v{b}, 0xffff0000, v{b}
v_sqrt_f32 v{b}, v{b}
s_nop 0
v_cvt_pk_bf16_f32 v{b}, v{b}, v{b}
v_and_b32 v{b}, 0xffff0000, v{b}
v_rcp_f32 v{b}, v{b}
s_nop 0""")
```

```python
from gen import *
import sys, math, struct
STAMPS = "--stamps" in sys.argv
OUT = [a for a in sys.argv[1:] if a.endswith(".s")][0]
def opt(name, dflt):
    for a in sys.argv:
        if a.startswith(f"--{name}="): return type(dflt)(a.split("=")[1])
    return dflt
A = Asm()
WS_H = 0; WS_KV = 14 << 20; WS_Y = 10 << 20; WS_ST = 12 << 20; KVS = 65536 + 768; WS_CS = (12 << 20) + 65536
FS = opt("fs", 7)
WS_FH = 13 << 20; WS_FK = WS_FH + (1024 << FS); WS_FY = WS_FK + (256 << FS)
SLP = opt("slp", 4)
WS_SZ = 17 << 20
STAMP_OFF = 200 << 20
SPIN = 200000
L_X = 98304; L_M = 159744
L_TAG = L_M + 2048; L_ST2 = L_M + 2560
L_CV = 98304; CH_SZ = 21248; L_EX = 140800; L_PF = L_M + 3072; RING = 24576
S_WAVE = 3; S_XCD = 4; S_IDX = 5; S_TAG = 6
P_Q, P_K, P_V, P_SH, P_H, P_D, P_BX, P_WG = 16, 18, 20, 22, 24, 26, 28, 30
P_WU, P_WD, P_OUT, P_DBG, P_WS = 32, 34, 36, 38, 40
R_WS = 44; R_A = 48; R_B = 52; R_C = 56; R_D = 60; R_DBG = 64
T = 68
VT = 28
def f2u(x): return struct.unpack("<I", struct.pack("<f", x))[0]
class VQ:
    def __init__(s): s.q = []
    def add(s, tag, n=1): s.q += [tag] * n
    def wait(s, *tags):
        idx = [i for i, t in enumerate(s.q) if t in tags]
        if not idx: return
        n = len(s.q) - 1 - idx[-1]; assert n < 64
        A(f"s_waitcnt vmcnt({n})"); s.q = s.q[idx[-1] + 1:]
def stamp(i, wave=0):
    if not STAMPS: return
    A(f"""s_memrealtime s[96:97]
s_waitcnt lgkmcnt(0)
v_writelane_b32 v0, s96, {i}""")
def tag_check(vt):
    l = A.label("tag"); d = A.label("tagd")
    A(f"""s_mov_b32 s{T}, {SPIN}
{l}:
v_readfirstlane_b32 s{S_TAG}, v{vt}
v_readfirstlane_b32 s{S_TAG+1}, v{vt+1}
s_cmp_lg_u32 s{S_TAG+1}, 0
s_cbranch_scc1 {d}
s_sleep 2
buffer_load_dwordx2 v[{vt}:{vt+1}], off, s[{R_DBG}:{R_DBG+3}], 0 sc1
s_sub_u32 s{T}, s{T}, 1
s_cmp_lg_u32 s{T}, 0
s_waitcnt vmcnt(0)
s_cbranch_scc1 {l}
{d}:""")
def tag_load(vt): A(f"buffer_load_dwordx2 v[{vt}:{vt+1}], off, s[{R_DBG}:{R_DBG+3}], 0 {opt('tagpol', '')}")
def poll_load(voff, soff, vt): A(f"buffer_load_dwordx2 v[{vt}:{vt+1}], v{voff}, s[{R_WS}:{R_WS+3}], s{soff} offen sc1")
def poll_check(voff, soff, vt):
    l = A.label("pl"); d = A.label("pld")
    A(f"""s_mov_b32 s{T}, {SPIN}
{l}:
v_cmp_ne_u64 vcc, s[{S_TAG}:{S_TAG+1}], v[{vt}:{vt+1}]
s_cbranch_vccz {d}
s_sleep {SLP}""")
    poll_load(voff, soff, vt)
    A(f"""s_sub_u32 s{T}, s{T}, 1
s_cmp_lg_u32 s{T}, 0
s_waitcnt vmcnt(0)
s_cbranch_scc1 {l}
{d}:""")
def poll(voff, soff, vt):
    poll_load(voff, soff, vt); A("s_waitcnt vmcnt(0)"); poll_check(voff, soff, vt)
def publish(soff):
    A(f"""v_mov_b32 v{VT}, s{S_TAG}
v_mov_b32 v{VT+1}, s{S_TAG+1}
s_mov_b64 exec, 1
buffer_store_dwordx2 v[{VT}:{VT+1}], off, s[{R_WS}:{R_WS+3}], s{soff} sc1
s_mov_b64 exec, -1""")
def mfma(d, a, b, c=None): A(f"v_mfma_f32_16x16x32_bf16 {vr(d,4)}, {vr(a,4)}, {vr(b,4)}, {vr(d,4) if c is None else c}")
def dma(voff, r, soff, pol=""): A(f"buffer_load_dwordx4 v{voff}, s[{r}:{r+3}], s{soff} offen {pol} lds")
def h_loads(q):
    srd(A, R_C, P_H, 512 * 2048 * 2); srd(A, R_D, P_D, 1024)
    A(f"""s_lshl_b32 s43, s{S_XCD}, 5
s_add_u32 s43, s43, s{S_IDX}
s_lshl_b32 s43, s43, 1
s_bfe_u32 s{T}, s{S_WAVE}, 0x10001
s_add_u32 s43, s43, s{T}
s_and_b32 s90, s{S_WAVE}, 1
s_lshl_b32 s{T}, s43, 12
s_lshl_b32 s{T+1}, s90, 11
s_add_u32 s{T}, s{T}, s{T+1}
s_lshl_b32 s{T+1}, s43, 1
v_lshlrev_b32 v9, 4, v2""")
    for n in range(2):
        for c in range(3):
            A(f"buffer_load_dwordx4 {vr(64+12*n+4*c,4)}, v9, s[{R_C}:{R_C+3}], s{T} offen offset:{1024*n+4*c} {opt('polc','')}")
    A(f"buffer_load_ushort v112, off, s[{R_D}:{R_D+3}], s{T+1}")
    q.add("h", 7)

def fk_poll_load():
    A(f"""v_min_u32 v8, 31, v2
v_lshlrev_b32 v8, {FS}, v8
s_lshl_b32 s42, s{S_XCD}, {5+FS}
s_add_u32 s42, s42, {WS_FK}""")
    poll_load(8, 42, VT + 2)
def tile_ids():
    A(f"""s_lshl_b32 s76, s{S_XCD}, 2
s_and_b32 s77, s{S_IDX}, 3
s_add_u32 s76, s76, s77
s_lshr_b32 s77, s{S_IDX}, 2""")
R_W = 92
def wd_setup():
    srd(A, R_W, P_WD, 1792 * 512 * 2)
    A(f"""v_lshrrev_b32 v24, 3, v2
v_bfe_u32 v25, v2, 1, 2
v_xor_b32 v25, v25, v1
v_lshlrev_b32 v24, 10, v24
v_lshl_add_u32 v24, v25, 5, v24
v_and_b32 v25, 1, v2
v_lshl_add_u32 v24, v25, 4, v24
s_and_b32 s83, s{S_WAVE}, 3
s_mul_i32 s82, s83, {14*32*1024}
s_lshl_b32 s{T}, s77, 7
s_add_u32 s82, s82, s{T}
s_lshl_b32 s83, s83, 12""")
def slot(s): return [4, 5, 0, 1, 2, 3][s % 6] * 16384
def ldD(s):
    return [f"s_add_u32 m0, s83, {slot(s) + i * 1024}\ns_add_u32 s{T}, s82, {(32 * s + 8 * i) * 1024}\nbuffer_load_dwordx4 v24, s[{R_W}:{R_W+3}], s{T} offen {opt('pold', '')} lds" for i in range(4)]
def u_loads():
    A(f"""s_lshl_b32 s{T}, s43, 7
s_mul_i32 s{T+1}, s90, {16*KVS}
s_add_u32 s{T}, s{T}, s{T+1}
s_add_u32 s{T}, s{T}, {WS_KV}
s_add_u32 s{T+1}, s{T}, {8*KVS}
v_lshrrev_b32 v8, 3, v2
v_mul_u32_u24 v8, {KVS}, v8
v_and_b32 v9, 7, v2
v_lshl_add_u32 v8, v9, 4, v8
buffer_load_dwordx4 v[114:117], v8, s[{R_WS}:{R_WS+3}], s{T} offen sc1
buffer_load_dwordx4 v[118:121], v8, s[{R_WS}:{R_WS+3}], s{T+1} offen sc1
v_lshlrev_b32 v8, 3, v2
s_lshl_b32 s{T}, s76, 9
s_add_u32 s{T}, s{T}, {WS_ST}
buffer_load_dwordx2 v[122:123], v8, s[{R_WS}:{R_WS+3}], s{T} offen sc1""")
A(f"""s_cmp_ge_u32 s2, 256
s_cbranch_scc1 L_end
s_load_dwordx16 s[16:31], s[0:1], 0
s_load_dwordx8 s[32:39], s[0:1], 64
s_load_dwordx2 s[40:41], s[0:1], 96
v_lshrrev_b32 v1, 6, v0
v_and_b32 v2, 63, v0
s_and_b32 s{S_XCD}, s2, 7
v_readfirstlane_b32 s{S_WAVE}, v1
s_lshr_b32 s{S_IDX}, s2, 3
v_and_b32 v3, 15, v2
v_lshrrev_b32 v1, 4, v2
s_waitcnt lgkmcnt(0)""")
srd(A, R_WS, P_WS, WS_SZ); srd(A, R_DBG, P_DBG, 256); tile_ids()
A(f"s_lshl_b32 s{T}, s{S_WAVE}, 2\ns_add_u32 s{T}, s{T}, {L_PF}\nv_mov_b32 v4, s{T}\nv_mov_b32 v5, 0\nds_write_b32 v4, v5")
if STAMPS: A("v_mov_b32 v0, 0")
stamp(0)
A(f"""s_cmp_lg_u32 s2, 0
s_cbranch_scc1 L_notag
s_cmp_lg_u32 s{S_WAVE}, 7
s_cbranch_scc1 L_notag
s_memrealtime s[{T}:{T+1}]
s_waitcnt lgkmcnt(0)
s_or_b32 s{T+1}, s{T+1}, 0x80000000
v_mov_b32 v4, s{T}
v_mov_b32 v5, s{T+1}
s_mov_b64 exec, 1
buffer_store_dwordx2 v[4:5], off, s[{R_DBG}:{R_DBG+3}], 0 sc1
s_mov_b64 exec, -1
L_notag:
s_cmp_lt_u32 s{S_IDX}, 4
s_cbranch_scc1 L_prep
s_sub_u32 s{T}, s{S_IDX}, 4
s_and_b32 s8, s{S_XCD}, 3
s_lshl_b32 s8, s8, 2
s_and_b32 s{T+1}, s{T}, 3
s_add_u32 s8, s8, s{T+1}
s_lshr_b32 s9, s{S_XCD}, 2
s_mul_i32 s9, s9, 7
s_lshr_b32 s{T+1}, s{T}, 2
s_add_u32 s9, s9, s{T+1}
s_cmp_lt_u32 s{S_WAVE}, 4
s_cbranch_scc1 L_g1""")
q = VQ()
A(f"""s_sub_u32 s10, s{S_WAVE}, 4
s_cmp_lt_u32 s10, 2
s_cselect_b32 s{T}, s{P_WG}, s{P_WU}
s_cselect_b32 s{T+1}, s{P_WG+1}, s{P_WU+1}""")
srd(A, R_A, T, 512 * 1792 * 2); srd(A, R_B, P_Q, 2048 * 512 * 2)
A(f"""s_and_b32 s11, s10, 1
s_lshl_b32 s11, s11, 4
v_add_u32 v4, s11, v1
v_mul_u32_u24 v4, 3584, v4
v_lshrrev_b32 v5, 1, v3
v_xor_b32 v5, v5, v1
v_lshl_add_u32 v4, v5, 5, v4
v_and_b32 v5, 1, v3
v_lshl_add_u32 v4, v5, 4, v4
v_xor_b32 v5, 128, v4
v_lshrrev_b32 v6, 3, v2
v_and_b32 v7, 7, v2
v_xor_b32 v7, v7, v6
s_lshl_b32 s{T}, s10, 5
v_add_u32 v6, s{T}, v6
v_lshlrev_b32 v6, 10, v6
v_lshl_add_u32 v6, v7, 4, v6
s_lshl_b32 s12, s9, 8
s_lshl_b32 s13, s8, 17
s_lshl_b32 s14, s10, 12
s_add_u32 s15, s14, {L_X}""")
ROT = opt("rot", 1)
A(f"""s_sub_u32 s{T}, s{S_IDX}, 4
s_and_b32 s{T+1}, s{T}, 3
s_lshl_b32 s{T+1}, s{T+1}, 1
s_lshr_b32 s{T}, s{T}, 2
s_add_u32 s{T}, s{T}, s{T+1}
s_and_b32 s{T}, s{T}, {7 if ROT else 0}
s_add_u32 s80, s12, {512*3584}
s_add_u32 s81, s13, 1024
s_mul_i32 s{T+1}, s{T}, {64*3584}
s_add_u32 s12, s12, s{T+1}
s_lshl_b32 s{T+1}, s{T}, 7
s_add_u32 s13, s13, s{T+1}""")
POLW = opt("polw", ""); POLX = opt("polx", "")
def ldW(n):
    for i in range(4):
        A(f"s_add_u32 m0, s14, {(n % 6) * 16384 + i * 1024}\ns_add_u32 s{T}, s12, {(32 * (n & 1) + 4 * i) * 3584}")
        dma(4 + (i >> 1), R_A, T, POLW)
    if n & 1: A(f"s_add_u32 s12, s12, {64*3584}\ns_cmp_eq_u32 s12, s80\ns_cselect_b32 s{T}, {512*3584}, 0\ns_sub_u32 s12, s12, s{T}")
    q.add(f"w{n}", 4)
def ldX(s):
    for i in range(4):
        A(f"s_add_u32 m0, s15, {(s % 3) * 16384 + i * 1024}\ns_add_u32 s{T}, s13, {i * 8192}")
        dma(6, R_B, T, POLX)
    A(f"s_add_u32 s13, s13, 128\ns_cmp_eq_u32 s13, s81\ns_cselect_b32 s{T}, 1024, 0\ns_sub_u32 s13, s13, s{T}")
    q.add(f"x{s}", 4)
def touch():
    PW = opt("pwx", 0)
    if PW & 1:
        A(f"""s_and_b32 s{T}, s8, 3
s_lshl_b32 s{T}, s{T}, 1
s_and_b32 s{T+1}, s10, 1
s_add_u32 s{T}, s{T}, s{T+1}
s_mul_i32 s{T}, s{T}, {32*3584}
s_lshl_b32 s{T+1}, s9, 8
s_add_u32 s{T}, s{T}, s{T+1}
s_add_u32 s{T}, s{T}, {256*3584}
v_lshrrev_b32 v8, 1, v2
v_mul_u32_u24 v8, 3584, v8
v_and_b32 v9, 1, v2
v_lshl_add_u32 v8, v9, 7, v8
buffer_load_dword v113, v8, s[{R_A}:{R_A+3}], s{T} offen""")
        q.add("pw")
    if PW & 2:
        A(f"""s_sub_u32 s{T}, s{S_IDX}, 4
s_lshr_b32 s{T}, s{T}, 2
s_add_u32 s{T}, s{T}, 3
s_min_u32 s{T}, s{T}, 7
s_lshl_b32 s{T}, s{T}, 7
s_lshl_b32 s{T+1}, s8, 17
s_add_u32 s{T}, s{T}, s{T+1}
s_lshl_b32 s{T+1}, s10, 15
s_add_u32 s{T}, s{T}, s{T+1}
v_and_b32 v8, 31, v2
v_lshlrev_b32 v8, 10, v8
buffer_load_dword v113, v8, s[{R_B}:{R_B+3}], s{T} offen""")
        q.add("px")
for i_, (f_, n_) in enumerate([(ldX,0),(ldW,0),(ldW,1),(ldX,1),(ldW,2),(ldW,3),(ldX,2),(ldW,4),(ldW,5)]):
    f_(n_)
    if i_ == opt("pwp", 8): touch()
wd_setup()
NT, NK, NU = opt("nt", 5), opt("nk", 10), opt("nu", 13)
def pfw(n):
  for hf in range(2):
    if n == opt(("pf1","pf2")[hf], (6,8)[hf]):
        A(f"""s_mul_i32 s{T}, s10, {448*1024}
s_mul_i32 s{T+1}, s{S_IDX}, 8192
s_add_u32 s{T}, s{T}, s{T+1}
s_add_u32 s{T}, s{T}, {hf*224*1024 - 4*8192 & 0xffffffff}
v_lshlrev_b32 v8, 7, v2
buffer_load_dword v113, v8, s[{R_W}:{R_W+3}], s{T} offen""")
        q.add("pf")
DN = 0
for n in range(17):
    if n < 16: q.wait(f"w{n}", f"x{n//2}")
    A("s_barrier")
    if n in (0, 7, 11, 16): stamp({0:1, 7:8, 11:9, 16:11}[n])
    if STAMPS and n in (11, 16): A(f"s_memtime s[96:97]\ns_waitcnt lgkmcnt(0)\nv_writelane_b32 v0, s96, {12 + (n == 16)}")
    if n == NT: tag_load(VT); q.add("tag")
    if n == opt("nh", 5): h_loads(q)
    if not opt("pfa", 0): pfw(n)
    if n == NK: q.wait("tag"); tag_check(VT); fk_poll_load(); q.add("fk")
    if n == NU:
        q.wait("fk"); poll_check(8, 42, VT + 2); stamp(10)
        A(f"""s_lshl_b32 s{T}, s8, 10
s_add_u32 s{T}, s{T}, {WS_ST}
v_lshlrev_b32 v8, 4, v2
buffer_load_dwordx4 v[124:127], v8, s[{R_WS}:{R_WS+3}], s{T} offen sc1""")
        u_loads(); q.add("u", 4)
    if 1 <= n <= 10: ldW(n + 5)
    if n >= 2 and n % 2 == 0 and n // 2 + 2 < 8: ldX(n // 2 + 2)
    if opt("pfa", 0): pfw(n)
    while n >= opt("nd", 11) and DN <= n - 11 and ((n == 16 and not opt("late", 0)) or DN < (n - opt("nd", 11) + 1) * opt("ndr", 6)):
        for x in ldD(DN): A(x)
        q.add("d", 4); DN += 1
q.wait("u")
A(f"""v_mov_b32 v8, {L_TAG}
ds_write_b64 v8, v[{VT}:{VT+1}]
v_lshlrev_b32 v8, 4, v2
v_add_u32 v8, {L_M}, v8
ds_write_b128 v8, v[124:127]
s_waitcnt lgkmcnt(0)""")
if opt("late", 0):
    A("s_barrier")
    for s_ in range(DN, 6):
        for x in ldD(s_): A(x)
    A("s_branch L_ph2b")
else: A("s_branch L_ph2aux")

ACC = 128; FB = [32, 80]; VA_X = 8; VA_W = 12
def acc(j, t): return ACC + (j * 4 + t) * 4
A("L_g1:")
if opt("pkv", 0):
    A(f"""s_bitcmp1_b32 s{S_IDX}, 0
s_cselect_b32 s{T}, s{P_V}, s{P_K}
s_cselect_b32 s{T+1}, s{P_V+1}, s{P_K+1}""")
    srd(A, R_A, T, 2048 * 512 * 2)
    A(f"""s_lshl_b32 s{T}, s{S_XCD}, 2
s_add_u32 s{T}, s{T}, s{S_WAVE}
s_lshl_b32 s{T}, s{T}, 16
s_lshr_b32 s{T+1}, s{S_IDX}, 1
s_lshl_b32 s{T+1}, s{T+1}, 12
s_add_u32 s{T}, s{T}, s{T+1}
v_and_b32 v5, 31, v2
v_lshlrev_b32 v5, 7, v5
buffer_load_dword v32, v5, s[{R_A}:{R_A+3}], s{T} offen""")
A(f"""s_and_b32 s10, s{S_WAVE}, 1
s_lshr_b32 s11, s{S_WAVE}, 1
v_and_b32 v5, 7, v3
v_xor_b32 v5, v1, v5
v_lshlrev_b32 v5, 4, v5
v_lshl_add_u32 v5, v3, 7, v5
s_lshl_b32 s{T}, s10, 13
s_add_u32 s{T}, s{T}, {L_X}
s_lshl_b32 s{T+1}, s11, 12
s_add_u32 s{T}, s{T}, s{T+1}
v_add_u32 v{VA_X}, s{T}, v5
v_xor_b32 v{VA_X+1}, 64, v{VA_X}
v_xor_b32 v{VA_X+2}, 4096, v{VA_X}
v_xor_b32 v{VA_X+3}, 4096, v{VA_X+1}
v_lshrrev_b32 v5, 2, v3
v_lshl_add_u32 v6, v1, 3, v5
v_lshlrev_b32 v6, 8, v6
v_and_b32 v7, 1, v1
v_lshl_or_b32 v5, v7, 2, v5
s_lshl_b32 s{T}, s11, 2
s_lshl_b32 s{T+1}, s10, 1
s_or_b32 s{T}, s{T}, s{T+1}
v_xor_b32 v5, s{T}, v5
v_lshl_add_u32 v6, v5, 5, v6
v_and_b32 v7, 3, v3
v_lshl_add_u32 v{VA_W}, v7, 3, v6
v_xor_b32 v{VA_W+1}, 32, v{VA_W}
v_xor_b32 v{VA_W+2}, 64, v{VA_W}
v_xor_b32 v{VA_W+3}, 96, v{VA_W}
v_mov_b32 v4, 0
v_mov_b32 v5, 0""")
A(f"s_setprio {opt('prio', 0)}")
for i in range(64): A(f"v_pk_mul_f32 {vr(ACC+2*i,2)}, v[4:5], v[4:5]")
for i in range(8): A(f"v_pk_mul_f32 {vr(16+2*i,2)}, v[4:5], v[4:5]")
for i in range(4): A(f"v_mov_b32 v{4+i}, 0x3f803f80")
def g1_reads(buf, par):
    r = []
    for j in range(8):
        for h in range(2):
            r.append(f"ds_read_b64_tr_b16 {vr(FB[buf]+16+4*j+2*h,2)}, v{VA_W+(j&3)} offset:{(j>>2)*8192+h*1024}")
    for t in range(4): r.insert(5 * t, f"ds_read_b128 {vr(FB[buf]+4*t,4)}, v{VA_X+par+(t&2)} offset:{(t&1)*2048}")
    return r
def g1_kstep(buf, reads, pre):
    ext = list(pre) + list(reads)
    for j in range(8):
        for t in range(4):
            mfma(acc(j, t), FB[buf] + 16 + 4 * j, FB[buf] + 4 * t)
            if ext: A(ext.pop(0))
        if j in (0, 1, 4, 5): mfma(16 + 4 * (0, 1, 4, 5).index(j), FB[buf] + 16 + 4 * j, 4)
    assert not ext
if opt("pkv", 0): A("s_waitcnt vmcnt(0)")
A("s_barrier")
for r in g1_reads(0, 0): A(r)
A(f"s_mov_b32 s12, 0\ns_mov_b32 s13, 0\ns_mov_b32 s14, 0\ns_mov_b32 s43, 16384\nL_g1loop:")
wadv = ["s_add_u32 s12, s12, 1", "s_cmp_eq_u32 s12, 6", f"s_cselect_b32 s15, {-5*16384 & 0xffffffff}, s43", "s_cselect_b32 s12, 0, s12"]
xadv = ["s_add_u32 s14, s14, 1", "s_cmp_eq_u32 s14, 3", f"s_cselect_b32 s42, {-2*16384 & 0xffffffff}, s43", "s_cselect_b32 s14, 0, s14"]
for x in wadv: A(x)
for i in range(4): A(f"v_add_u32 v{VA_W+i}, s15, v{VA_W+i}")
A("s_waitcnt lgkmcnt(0)\ns_barrier")
g1_kstep(0, g1_reads(1, 1), [])
for x in wadv + xadv: A(x)
for i in range(4): A(f"v_add_u32 v{VA_W+i}, s15, v{VA_W+i}")
for i in range(4): A(f"v_add_u32 v{VA_X+i}, s42, v{VA_X+i}")
A("s_waitcnt lgkmcnt(0)\ns_barrier")
g1_kstep(1, g1_reads(0, 0), [])
A("s_add_u32 s13, s13, 1\ns_cmp_lt_u32 s13, 8\ns_cbranch_scc1 L_g1loop\ns_waitcnt lgkmcnt(0)")
stamp(1, 0)
def ln_stats(a, b):
    A(f"""v_mul_f32 v{a}, {f2u(1/512)}, v{a}
v_mul_f32 v{b}, {f2u(1/512)}, v{b}
v_fma_f32 v{b}, -v{a}, v{a}, v{b}
v_max_f32 v{b}, 0, v{b}
v_cvt_pk_bf16_f32 v{VT}, v{a}, v{b}
v_lshlrev_b32 v{a}, 16, v{VT}
v_and_b32 v{b}, 0xffff0000, v{VT}
v_add_f32 v{b}, {f2u(1e-5)}, v{b}
v_cvt_pk_bf16_f32 v{b}, v{b}, v{b}
v_and_b32 v{b}, 0xffff0000, v{b}
v_sqrt_f32 v{b}, v{b}
s_nop 0
v_cvt_pk_bf16_f32 v{b}, v{b}, v{b}
v_and_b32 v{b}, 0xffff0000, v{b}
v_rcp_f32 v{b}, v{b}
s_nop 0""")
```
